```python
import torch

def _softmax(x, axis=-1):
    return torch.softmax(x, dim=axis)
def _gelu(x):
    return torch.nn.functional.gelu(x, approximate="tanh")
def _silu(x):
    return torch.nn.functional.silu(x)
def _sigmoid(x):
    return torch.sigmoid(x)
def _layernorm(x, axis=-1, eps=1e-5):
    m = x.mean(dim=axis, keepdim=True)
    v = x.var(dim=axis, keepdim=True, unbiased=False)
    return (x - m) / torch.sqrt(v + eps)
def _scatter_add(tgt, idx, src, axis=0):
    return tgt.clone().index_add_(axis, idx, src)
def _segment_sum(src, seg, n):
    out = torch.zeros((n,) + src.shape[1:], dtype=src.dtype)
    return out.index_add_(0, seg, src)
def _pad(x, pw):
    flat = tuple(v for pair in reversed(pw) for v in pair)
    return torch.nn.functional.pad(x, flat)

kernel_name = 'gated_mix__ssm_conv_s4__spectral_gfnet__prompt'

def setup_inputs():

    _w = (lambda a: (lambda t: t.to(torch.bfloat16) if t.is_floating_point() else t)(torch.as_tensor(a)))
    def _A_setup():
        B, L, D, N = 1, 2048, 448, 256
        A_re = -(lambda _x: torch.exp(torch.as_tensor(_x)))((lambda *s: torch.randn(*s, dtype=torch.bfloat16) * 3.2)(D, N))
        A_im = torch.pi * (lambda *s: torch.randn(*s, dtype=torch.bfloat16) * 0.05)(D, N)
        B_re = (lambda *s: torch.randn(*s, dtype=torch.bfloat16) * 0.1)(D, N)
        B_im = (lambda *s: torch.randn(*s, dtype=torch.bfloat16) * 0.1)(D, N)
        C_re = (lambda *s: torch.randn(*s, dtype=torch.bfloat16) * 0.1)(D, N)
        C_im = (lambda *s: torch.randn(*s, dtype=torch.bfloat16) * 0.1)(D, N)
        log_dt = (lambda *s: torch.randn(*s, dtype=torch.bfloat16) * 0.05)(D) * 0.5 - 4.0
        Dskip = (lambda *s: torch.randn(*s, dtype=torch.bfloat16) * 0.05)(D)
        return {
            "u": _w((lambda *s: torch.randn(*s, dtype=torch.bfloat16) * 0.05)(B, L, D)),
            "A_re": _w(A_re),
            "A_im": _w(A_im),
            "B_re": _w(B_re),
            "B_im": _w(B_im),
            "C_re": _w(C_re),
            "C_im": _w(C_im),
            "log_dt": _w(log_dt),
            "Dskip": _w(Dskip),
        }
    _A_in = _A_setup()

    def _B_setup():
        B, S, D = 1, 2048, 448
        Df = D // 2 + 1
        return {
            "x": _w((lambda *s: torch.randn(*s, dtype=torch.bfloat16) * 0.05)(B, S, D)),
            "w_r": _w((lambda *s: torch.randn(*s, dtype=torch.bfloat16) * 1.6)(S, Df) * 0.02),
            "w_i": _w((lambda *s: torch.randn(*s, dtype=torch.bfloat16) * 1.6)(S, Df) * 0.02),
        }
    _B_in = _B_setup()

    return {
        "A_u": _A_in["u"],
        "A_A_re": _A_in["A_re"],
        "A_A_im": _A_in["A_im"],
        "A_B_re": _A_in["B_re"],
        "A_B_im": _A_in["B_im"],
        "A_C_re": _A_in["C_re"],
        "A_C_im": _A_in["C_im"],
        "A_log_dt": _A_in["log_dt"],
        "A_Dskip": _A_in["Dskip"],
        "B_x": _B_in["x"],
        "B_w_r": _B_in["w_r"],
        "B_w_i": _B_in["w_i"],
        "gate_w": _w((lambda *s: torch.randn(*s, dtype=torch.bfloat16) * 0.05)(448) * 16.0),
    }

def reference(A_u, A_A_re, A_A_im, A_B_re, A_B_im, A_C_re, A_C_im, A_log_dt, A_Dskip, B_x, B_w_r, B_w_i, gate_w):
    def _A_ref(u, A_re, A_im, B_re, B_im, C_re, C_im, log_dt, Dskip):
        Bsz, L, D = u.shape
        dt = torch.exp(log_dt)[:, None]
        A = A_re + 1j * A_im
        Bc = B_re + 1j * B_im
        Cc = C_re + 1j * C_im
        logdA = dt * A
        dB = dt * Bc
        l = (lambda x, dt: x.to(dt))(torch.arange(L), A_re.dtype)
        P = torch.exp(logdA[:, :, None] * l[None, None, :])
        K = torch.einsum("dn,dnl,dn->dl", Cc, P, dB).real
        L2 = 2 * L
        Kp = _pad(K, ((0, 0), (0, L)))
        up = (lambda x, *d: x.permute(*d))(u, 0, 2, 1)
        up = _pad(up, ((0, 0), (0, 0), (0, L)))
        Kf = (lambda x, axes=(-2,-1): torch.fft.rfft2(x.float(), dim=axes))(Kp[:, None, :], axes=(-2, -1))
        Uf = (lambda x, axes=(-2,-1): torch.fft.rfft2(x.float(), dim=axes))(up[:, :, None, :], axes=(-2, -1))
        Yf = Uf * Kf[None, :, :, :]
        y = (lambda x, s, axes=(-2,-1): torch.fft.irfft2(x, s=s, dim=axes).to(torch.bfloat16))(Yf, (1, L2), axes=(-2, -1))[:, :, 0, :L]
        y = (lambda x, *d: x.permute(*d))(y, 0, 2, 1) + u * Dskip[None, None, :]
        return y

    def _B_ref(x, w_r, w_i):
        B, S, D = x.shape
        X = (lambda x, axes=(-2,-1): torch.fft.rfft2(x.float(), dim=axes))(x, axes=(-2, -1))
        W = w_r + 1j * w_i
        X = X * W
        y = (lambda x, s, axes=(-2,-1): torch.fft.irfft2(x, s=s, dim=axes).to(torch.bfloat16))(X, (S, D), axes=(-2, -1))
        return y

    x = A_u
    g = _sigmoid((x * gate_w).sum(-1, keepdims=True))
    a = _A_ref(x, A_A_re, A_A_im, A_B_re, A_B_im, A_C_re, A_C_im, A_log_dt, A_Dskip)
    b = _B_ref(x, B_w_r, B_w_i)
    return g * a + (1 - g) * b
```

```python
import re

REG_RE = re.compile(r'^(-?)(\|?)(abs\()?([vas])(?:(\d+)|\[(\d+):(\d+)\])\)?\|?$')

def parse_reg(tok):
    t = tok.strip()
    if t in ('vcc', 'exec'):
        return (t, 0, 1)
    if t in ('vcc_lo', 'vcc_hi'):
        return ('vcc', 0, 1)
    if t in ('exec_lo', 'exec_hi'):
        return ('exec', 0, 1)
    if t == 'm0':
        return ('m0', 0, 0)
    m = REG_RE.match(t)
    if not m:
        return None
    k = m.group(4)
    if m.group(5) is not None:
        return (k, int(m.group(5)), int(m.group(5)))
    return (k, int(m.group(6)), int(m.group(7)))

def regs_of(r):
    if r is None: return set()
    k, lo, hi = r
    return {(k, i) for i in range(lo, hi + 1)}

TRANS = ('v_exp_f32', 'v_log_f32', 'v_rcp_f32', 'v_rsq_f32', 'v_sqrt_f32', 'v_sin_f32', 'v_cos_f32', 'v_rcp_iflag_f32')

class Ins:
    __slots__ = ('text', 'mn', 'ops', 'mods', 'kind', 'wr', 'rd', 'passes', 'srcc', 'dpp', 'isdata', 'nstates', 'acc', 'stdata')
    def __init__(self, text):
        self.text = text
        body = text.split(';')[0].strip()
        self.kind = 'other'; self.wr = set(); self.rd = set(); self.passes = 0; self.srcc = set(); self.dpp = False
        self.nstates = 1; self.acc = set(); self.stdata = set()
        if not body or body.endswith(':') or body.startswith('.'):
            self.kind = 'label' if body.endswith(':') else 'nop0'
            self.mn = body; self.ops = []; self.nstates = 0
            return
        parts = body.split(None, 1)
        mn = parts[0]; self.mn = mn
        rest = parts[1] if len(parts) > 1 else ''
        ops = []; cur = ''; depth = 0
        for ch in rest:
            if ch == '[': depth += 1
            if ch == ']': depth -= 1
            if ch == ',' and depth == 0:
                ops.append(cur.strip()); cur = ''
            else:
                cur += ch
        if cur.strip(): ops.append(cur.strip())
        mods = ''
        if ops:
            last = ops[-1].split(None, 1)
            ops[-1] = last[0]
            if len(last) > 1: mods = last[1]
        self.ops = ops; self.mods = mods
        R = [parse_reg(o) for o in ops]
        base = re.sub(r'_(e32|e64|dpp|sdwa)$', '', mn)
        if mn == 's_nop':
            self.kind = 'nop'; self.nstates = int(ops[0], 0) + 1
        elif mn.startswith('v_mfma') or mn.startswith('v_smfmac'):
            self.kind = 'mfma'
            self.wr = regs_of(R[0]); self.rd = regs_of(R[1]) | regs_of(R[2]) | regs_of(R[3]); self.srcc = regs_of(R[3])
            self.passes = 8 if '32x32' in mn else 4
            if 'f32_32x32x2_f32' in mn: self.passes = 16
            if 'f32_16x16x4_f32' in mn: self.passes = 8
        elif mn.startswith('v_'):
            self.kind = 'trans' if base in TRANS else 'valu'
            self.dpp = ('dpp' in mn) or any(k in mods for k in ('quad_perm', 'row_shl', 'row_shr', 'row_ror', 'row_bcast', 'row_mirror', 'row_half_mirror', 'wave_', 'row_newbcast'))
            if base.startswith('v_cmpx'):
                self.wr = regs_of(R[0]) | regs_of(('exec', 0, 1)); self.rd = set().union(*[regs_of(r) for r in R[1:]])
            elif base.startswith('v_cmp'):
                self.wr = regs_of(R[0]); self.rd = set().union(*[regs_of(r) for r in R[1:]])
            elif base.startswith('v_permlane') and 'swap' in base:
                self.wr = regs_of(R[0]) | regs_of(R[1]); self.rd = set(self.wr); self.kind = 'permlane'
            elif base in ('v_add_co_u32', 'v_sub_co_u32', 'v_subrev_co_u32', 'v_addc_co_u32', 'v_subb_co_u32', 'v_div_scale_f32'):
                self.wr = regs_of(R[0]) | regs_of(R[1]); self.rd = set().union(*[regs_of(r) for r in R[2:]])
            else:
                self.wr = regs_of(R[0]); self.rd = set().union(set(), *[regs_of(r) for r in R[1:]])
                if base in ('v_fmac_f32', 'v_pk_fmac_f16', 'v_mac_f32', 'v_writelane_b32', 'v_dot2c_f32_bf16') or self.dpp:
                    self.rd |= self.wr
                if base.startswith('v_cndmask') and len(ops) == 3:
                    self.rd |= regs_of(('vcc', 0, 1))
                if base in ('v_readfirstlane_b32', 'v_readlane_b32'):
                    self.kind = 'readlane'
        elif mn.startswith('ds_'):
            self.kind = 'ds'
            if mn.startswith('ds_read') or mn.startswith('ds_bpermute') or mn.startswith('ds_permute') or mn.startswith('ds_swizzle'):
                self.wr = regs_of(R[0]); self.rd = set().union(set(), *[regs_of(r) for r in R[1:]])
            else:
                self.rd = set().union(set(), *[regs_of(r) for r in R])
            if 'addtid' in mn: self.rd |= {('m0', 0)}
        elif mn.startswith('buffer_') or mn.startswith('global_'):
            self.kind = 'vmem'
            islds = ' lds' in (' ' + mods) or 'load_lds' in mn
            if mn in ('buffer_wbl2', 'buffer_inv'):
                pass
            elif 'load' in mn and not islds:
                self.wr = regs_of(R[0]); self.rd = set().union(set(), *[regs_of(r) for r in R[1:]])
            else:
                self.rd = set().union(set(), *[regs_of(r) for r in R])
                if islds: self.rd |= {('m0', 0)}
                if 'store' in mn and ('x3' in mn or 'x4' in mn):
                    self.stdata = regs_of(R[0] if mn.startswith('buffer_') else R[1])
                if 'atomic' in mn and 'sc0' in mods:
                    self.wr = regs_of(R[0])
        elif mn.startswith('s_'):
            self.kind = 'salu'
            if mn.startswith('s_cbranch') or mn == 's_branch':
                self.kind = 'branch'
            elif mn.startswith('s_cmp') or mn in ('s_waitcnt', 's_barrier', 's_endpgm', 's_setprio', 's_sleep'):
                self.rd = set().union(set(), *[regs_of(r) for r in R])
            elif mn.startswith('s_load') or mn.startswith('s_memtime') or mn.startswith('s_memrealtime'):
                self.kind = 'smem'; self.wr = regs_of(R[0]); self.rd = set().union(set(), *[regs_of(r) for r in R[1:]])
            else:
                self.wr = regs_of(R[0]); self.rd = set().union(set(), *[regs_of(r) for r in R[1:]])
                if 'saveexec' in mn:
                    self.wr |= regs_of(('exec', 0, 1))

def isvalu(i): return i.kind in ('valu', 'trans', 'permlane', 'readlane')

def need(prod, cons):
    n = 0
    vw = {r for r in prod.wr if r[0] in 'va' and len(r[0]) == 1}
    if prod.kind == 'mfma':
        p = prod.passes
        big = {2: 5, 4: 8, 8: 12, 16: 20}[p]
        if cons.kind == 'mfma':
            ab = cons.rd - cons.srcc
            ca = regs_of(parse_reg(cons.ops[1])) | regs_of(parse_reg(cons.ops[2]))
            if vw & ca: n = max(n, big)
            if vw & cons.srcc:
                if cons.srcc == vw and cons.passes == p: n = max(n, 2 if p == 2 else 0)
                else: n = max(n, {2: 4, 4: 6, 8: 10, 16: 18}[p])
            elif vw & cons.wr:
                n = max(n, {2: 4, 4: 6, 8: 10, 16: 18}[p])
        elif isvalu(cons) or cons.kind in ('ds', 'vmem'):
            if vw & (cons.rd | cons.wr): n = max(n, big)
        if (isvalu(cons) or cons.kind in ('ds', 'vmem')) and (prod.srcc & cons.wr):
            n = max(n, {2: 1, 4: 3, 8: 7, 16: 15}[p])
    elif isvalu(prod):
        if cons.kind == 'mfma' and (vw & cons.rd): n = max(n, 2)
        if cons.kind == 'permlane' and (vw & cons.rd): n = max(n, 2)
        if isvalu(cons) and cons.dpp and (vw & cons.rd): n = max(n, 2)
        if cons.kind == 'readlane' and (vw & cons.rd): n = max(n, 1)
        if prod.kind == 'trans' and isvalu(cons) and cons.kind != 'trans' and (vw & cons.rd): n = max(n, 1)
        if prod.kind == 'trans' and cons.kind == 'trans' and (vw & cons.rd): n = max(n, 1)
        if 'op_sel' in prod.mods and not prod.mn.startswith('v_pk_') and isvalu(cons) and (vw & (cons.rd | cons.wr)): n = max(n, 1)
        if 'sdwa' in prod.mn and isvalu(cons) and (vw & (cons.rd | cons.wr)): n = max(n, 1)
        sw = {r for r in prod.wr if r[0] in ('s', 'vcc')}
        if sw:
            if isvalu(cons) and (sw & cons.rd): n = max(n, 4 if cons.mn.startswith(('v_readlane', 'v_writelane')) else 2)
            if cons.kind == 'vmem' and (sw & cons.rd): n = max(n, 5)
            if cons.kind in ('salu', 'branch', 'smem') and (sw & cons.rd): n = max(n, 4)
            if cons.kind == 'branch' and 'vcc' in cons.mn and any(r[0] == 'vcc' for r in sw): n = max(n, 5)
        if any(r[0] == 'exec' for r in prod.wr):
            n = max(n, 5)
    elif prod.kind == 'salu':
        if ('m0', 0) in prod.wr and ('m0', 0) in cons.rd and cons.kind in ('ds', 'vmem'): n = max(n, 1)
        if any(r[0] == 'exec' for r in prod.wr) and cons.kind == 'mfma': n = max(n, 1)
    elif prod.kind == 'vmem':
        if prod.stdata and (prod.stdata & cons.wr) and (isvalu(cons) or cons.kind in ('ds', 'vmem', 'mfma')):
            n = max(n, 2)
    return n

class Asm:
    def __init__(self):
        self.lines = []
    def __call__(self, text):
        for l in text.split('\n'):
            if l.strip(): self.lines.append(l.rstrip())
    def label(self, name): self.lines.append(name + ':')
    def c(self, text): self.lines.append('    ; ' + text)
    def finish(self, window=24):
        ins = [Ins(l) for l in self.lines]
        labels = {i.mn[:-1]: k for k, i in enumerate(ins) if i.kind == 'label'}
        pads = [0] * len(ins)
        def scan(hist, start, target_idx, limit):
            extra = 0
            dist = 0
            k = start
            steps = 0
            while k < len(ins) and dist < window and steps < 200:
                i = ins[k]; steps += 1
                dist += pads[k]
                if i.kind in ('label', 'nop0'):
                    k += 1; continue
                for (p, d) in hist:
                    nd = need(p, i)
                    if nd > d + dist: extra = max(extra, nd - (d + dist))
                dist += i.nstates
                if i.mn in ('s_endpgm', 's_branch'): break
                k += 1
            return extra
        changed = True
        it = 0
        while changed:
            changed = False; it += 1
            assert it < 50
            hist = []
            for k, i in enumerate(ins):
                if i.kind in ('label', 'nop0'): continue
                hist = [(p, d + pads[k]) for (p, d) in hist]
                req = 0
                for (p, d) in hist:
                    nd = need(p, i)
                    if nd > d: req = max(req, nd - d)
                if i.kind == 'branch':
                    tgt = labels.get(i.ops[0])
                    if tgt is not None:
                        req = max(req, scan([(p, d + 1) for (p, d) in hist], tgt, k, window))
                if req:
                    pads[k] += req; changed = True
                    hist = [(p, d + req) for (p, d) in hist]
                hist = [(p, d + i.nstates) for (p, d) in hist if d + i.nstates < window]
                if i.kind != 'nop': hist.append((i, 0))
                if i.mn in ('s_endpgm', 's_branch'): hist = []
        out = []
        for k, i in enumerate(ins):
            n = pads[k]
            while n > 0:
                m = min(n, 16); out.append(f'    s_nop {m-1}'); n -= m
            t = i.text
            if i.kind == 'label': out.append(t.strip())
            else: out.append('    ' + t.strip())
        return '\n'.join(out) + '\n'

def vr(base, n=1):
    return f'v{base}' if n == 1 else f'v[{base}:{base+n-1}]'
def sr(base, n=1):
    return f's{base}' if n == 1 else f's[{base}:{base+n-1}]'
def ar(base, n=1):
    return f'a{base}' if n == 1 else f'a[{base}:{base+n-1}]'
```

```python
from asm import Asm, vr, sr, ar
import struct, math
def f2u(x): return struct.unpack('<I', struct.pack('<f', x))[0]
def fl(x): return '0x%08x' % f2u(x)
LOG2E = fl(math.log2(math.e))
KA = dict(u=0, A_re=8, A_im=16, B_re=24, B_im=32, C_re=40, C_im=48, log_dt=56, Dskip=64, B_x=72, w_r=80, w_i=88, gate_w=96, out=104, dbg=112, ws=120)
S, D = 2048, 448
XBYTES = S * D * 2
WS_X1 = 0
WS_WT = 0x200000
WS_XT0 = 0x400000
XT_STRIDE = 4112
WS_XT1 = 0x600000
WS_KX = 0x800000
WS_GT = 0xA00000
WS_Z = 0xB00000
WS_AT = 0xD00000
WS_END = 0xF00000

def pair(r): return vr(r, 2)
def cmul(a, dst, x, y, tmp=None):
    t = dst if tmp is None else tmp
    a(f'v_pk_mul_f32 {pair(t)}, {pair(x)}, {pair(y)} op_sel:[0,0] op_sel_hi:[1,0]')
    a(f'v_pk_fma_f32 {pair(dst)}, {pair(x)}, {pair(y)}, {pair(t)} op_sel:[1,1,0] op_sel_hi:[0,1,1] neg_lo:[1,0,0]')

def add64(a, sdst, ssrc, off):
    a(f's_add_u32 s{sdst}, s{ssrc}, {off}')
    a(f's_addc_u32 s{sdst+1}, s{ssrc+1}, 0')

def srd(a, sd, sbase, nbytes):
    a(f's_mov_b32 s{sd}, s{sbase}')
    a(f's_and_b32 s{sd+1}, s{sbase+1}, 0xffff')
    a(f's_mov_b32 s{sd+2}, {nbytes}')
    a(f's_mov_b32 s{sd+3}, 0x00020000')

def kernel_desc(name, vgpr, sgpr=96):
    acc = (vgpr + 3) // 4 * 4
    return f""".section .rodata,"a"
.p2align 6
.amdhsa_kernel {name}
  .amdhsa_next_free_vgpr {vgpr}
  .amdhsa_next_free_sgpr {sgpr}
  .amdhsa_accum_offset {acc}
  .amdhsa_group_segment_fixed_size 0
  .amdhsa_kernarg_size 128
  .amdhsa_user_sgpr_count 2
  .amdhsa_user_sgpr_kernarg_segment_ptr 1
  .amdhsa_system_sgpr_workgroup_id_x 1
  .amdhsa_float_denorm_mode_32 3
.end_amdhsa_kernel
.text
"""
def kernel_head(name):
    return f""".globl {name}
.p2align 8
.type {name},@function
{name}:
"""

def radix8(a, zr, zi, tmp, out, inverse):
    R2 = fl(math.sqrt(0.5))
    ar01, ar23, ai01, ai23 = tmp, tmp + 2, tmp + 4, tmp + 6
    br01, bi01, pr23, pi23 = tmp + 8, tmp + 10, tmp + 12, tmp + 14
    pk = lambda op, d, x, y, m='': a(f'v_pk_{op}_f32 {pair(d)}, {pair(x)}, {pair(y)} {m}'.rstrip())
    NEG = 'neg_lo:[0,1] neg_hi:[0,1]'
    pk('add', ar01, zr[0], zr[2]); pk('add', ar23, zr[1], zr[3])
    pk('add', ai01, zi[0], zi[2]); pk('add', ai23, zi[1], zi[3])
    pk('add', br01, zr[0], zr[2], NEG); pk('add', bi01, zi[0], zi[2], NEG)
    z2r, z3r, z6r, z7r = zr[1], zr[1] + 1, zr[3], zr[3] + 1
    z2i, z3i, z6i, z7i = zi[1], zi[1] + 1, zi[3], zi[3] + 1
    b3r, b3i = zr[0], zr[0] + 1
    a(f'v_sub_f32 v{b3r}, v{z3r}, v{z7r}')
    a(f'v_sub_f32 v{b3i}, v{z3i}, v{z7i}')
    if not inverse:
        a(f'v_sub_f32 v{pr23}, v{z2i}, v{z6i}')
        a(f'v_sub_f32 v{pi23}, v{z6r}, v{z2r}')
    else:
        a(f'v_sub_f32 v{pr23}, v{z6i}, v{z2i}')
        a(f'v_sub_f32 v{pi23}, v{z2r}, v{z6r}')
    s0, s1 = zi[0], zi[0] + 1
    b1r, b1i = br01 + 1, bi01 + 1
    if not inverse:
        a(f'v_sub_f32 v{s0}, v{b3i}, v{b3r}')
        a(f'v_add_f32 v{s1}, v{b3r}, v{b3i}')
        a(f'v_mul_f32 v{pr23+1}, {R2}, v{s0}')
        a(f'v_mul_f32 v{pi23+1}, {fl(-math.sqrt(0.5))}, v{s1}')
        a(f'v_add_f32 v{s0}, v{b1r}, v{b1i}')
        a(f'v_sub_f32 v{s1}, v{b1i}, v{b1r}')
        a(f'v_mul_f32 v{b1r}, {R2}, v{s0}')
        a(f'v_mul_f32 v{b1i}, {R2}, v{s1}')
    else:
        a(f'v_add_f32 v{s0}, v{b3r}, v{b3i}')
        a(f'v_sub_f32 v{s1}, v{b3r}, v{b3i}')
        a(f'v_mul_f32 v{pr23+1}, {fl(-math.sqrt(0.5))}, v{s0}')
        a(f'v_mul_f32 v{pi23+1}, {R2}, v{s1}')
        a(f'v_sub_f32 v{s0}, v{b1r}, v{b1i}')
        a(f'v_add_f32 v{s1}, v{b1r}, v{b1i}')
        a(f'v_mul_f32 v{b1r}, {R2}, v{s0}')
        a(f'v_mul_f32 v{b1i}, {R2}, v{s1}')
    res = {}
    def dft4(Pr, Qr, Pi, Qi, regs, ms):
        Er, Or, Ei, Oi = regs
        pk('add', Er, Pr, Qr); pk('add', Or, Pr, Qr, NEG)
        pk('add', Ei, Pi, Qi); pk('add', Oi, Pi, Qi, NEG)
        pk('add', Pr, Er, Er, 'op_sel:[0,1] op_sel_hi:[0,1] neg_hi:[0,1]')
        pk('add', Pi, Ei, Ei, 'op_sel:[0,1] op_sel_hi:[0,1] neg_hi:[0,1]')
        if not inverse:
            pk('add', Qr, Or, Oi, 'op_sel:[0,1] op_sel_hi:[0,1] neg_hi:[0,1]')
            pk('add', Qi, Oi, Or, 'op_sel:[0,1] op_sel_hi:[0,1] neg_lo:[0,1]')
        else:
            pk('add', Qr, Or, Oi, 'op_sel:[0,1] op_sel_hi:[0,1] neg_lo:[0,1]')
            pk('add', Qi, Oi, Or, 'op_sel:[0,1] op_sel_hi:[0,1] neg_hi:[0,1]')
        res[ms[0]] = (Pr, Pi); res[ms[2]] = (Pr + 1, Pi + 1)
        res[ms[1]] = (Qr, Qi); res[ms[3]] = (Qr + 1, Qi + 1)
    free = [zr[0], zr[1], zr[2], zr[3]]
    dft4(ar01, ar23, ai01, ai23, [zr[1], zr[2], zr[3], zi[1]], (0, 2, 4, 6))
    dft4(br01, pr23, bi01, pi23, [zr[1], zr[2], zr[3], zi[1]], (1, 3, 5, 7))
    return res
```

```python
from common import *

K1_KREG = 14416
K1_B1BASE = 8 * K1_KREG
K1_B1REG = 5 * 1056
K1_TBASE = K1_B1BASE + 4 * K1_B1REG
K1_TREG = 4608
K1_LDS = K1_TBASE + 4 * K1_TREG

def gen_k1(name):
    a = Asm()
    a(f'''
    s_cmp_ge_u32 s2, 256
    s_cbranch_scc1 {name}_end
    v_lshrrev_b32 v1, 6, v0
    v_and_b32 v0, 63, v0
    v_readfirstlane_b32 s3, v1
    s_cmp_lt_u32 s3, 8
    s_cbranch_scc1 {name}_kgen
    s_cmp_lt_u32 s3, 12
    s_cbranch_scc1 {name}_b1
    s_branch {name}_t
    ''')
    kgen(a, name)
    b1(a, name)
    trole(a, name)
    a.label(f'{name}_end')
    a('s_endpgm')
    return a

def kgen(a, name):
    a.label(f'{name}_kgen')
    a(f'''
    s_cmp_ge_u32 s2, 224
    s_cbranch_scc1 {name}_end
    s_load_dwordx16 s[8:23], s[0:1], 8
    s_load_dwordx2 s[24:25], s[0:1], {KA['ws']}
    s_lshr_b32 s4, s3, 2
    s_lshl_b32 s5, s2, 1
    s_add_u32 s5, s5, s4            ; d
    s_and_b32 s6, s3, 3
    s_lshl_b32 s7, s5, 9
    s_lshl_b32 s26, s6, 7
    s_add_u32 s7, s7, s26
    v_lshl_add_u32 v1, v0, 1, s7
    s_lshl_b32 s28, s2, 2
    s_mul_i32 s29, s3, {K1_KREG}    ; KB
    s_waitcnt lgkmcnt(0)
    s_load_dword s27, s[20:21], s28
    global_load_ushort v2, v1, s[8:9]
    global_load_ushort v3, v1, s[10:11]
    global_load_ushort v4, v1, s[12:13]
    global_load_ushort v5, v1, s[14:15]
    global_load_ushort v6, v1, s[16:17]
    global_load_ushort v7, v1, s[18:19]
    ''')
    vW, vRA, vFB, vP = 60, 61, 62, 63
    a(f'''
    v_lshl_add_u32 v{vW}, v0, 2, s29
    v_and_b32 v8, 31, v0
    v_lshrrev_b32 v9, 5, v0
    v_min_u32 v10, 20, v8
    v_add_u32 v10, 32, v10
    v_mul_u32_u24 v10, 272, v10
    v_lshl_add_u32 v10, v9, 4, v10
    v_add_u32 v{vRA}, s29, v10
    v_mul_u32_u24 v10, 272, v8
    v_lshl_add_u32 v10, v9, 4, v10
    v_add_u32 v{vFB}, s29, v10
    v_lshl_add_u32 v{vP}, v0, 4, s29
    ''')
    vA0, vA8 = 64, 65
    a(f'''
    s_and_b32 s30, s3, 4
    s_mul_i32 s30, s30, {K1_KREG}
    s_add_u32 s31, s30, 4096                  ; KT
    s_lshl_b32 s33, s6, 6
    v_add_u32 v11, s33, v0                    ; blk
    ''')
    def addr_of(dst, blk):
        a(f'''
        v_lshrrev_b32 v12, 5, v{blk}          ; hi
        v_mov_b32 v14, 16
        v_lshrrev_b32 v13, v12, v14           ; 16 >> hi
        v_sub_u32 v13, 16, v13                ; 16 - (16>>hi)
        v_add_u32 v14, 12, v12                ; 12 + hi
        v_cmp_gt_u32 vcc, 4, v12
        v_cndmask_b32 v13, v14, v13, vcc      ; rowbase
        v_and_b32 v14, 31, v{blk}
        v_mul_u32_u24 v14, 80, v14
        v_lshl_add_u32 v14, v13, 1, v14
        v_add_u32 v{dst}, s31, v14
        ''')
    addr_of(vA0, 11)
    a('v_add_u32 v15, 1, v11')
    addr_of(vA8, 15)
    a(f'''
    s_waitcnt lgkmcnt(0)
    s_lshl_b32 s34, s27, 16
    s_and_b32 s35, s27, 0xffff0000
    s_cmp_eq_u32 s4, 0
    s_cselect_b32 s34, s34, s35
    v_mov_b32 v8, s34
    v_mul_f32 v8, {LOG2E}, v8
    v_exp_f32 v8, v8
    v_cvt_pk_bf16_f32 v8, v8, v8
    v_lshlrev_b32 v8, 16, v8                  ; dt
    s_waitcnt vmcnt(0)
    ''')
    for r in range(2, 8):
        a(f'v_lshlrev_b32 v{r}, 16, v{r}')
    va, vb = 10, 11
    dB, C, coef = 12, 14, 16
    E1, E8, W256 = 18, 20, 22
    a(f'''
    v_mul_f32 v{va}, v8, v2
    v_mul_f32 v{va}, {LOG2E}, v{va}
    v_mul_f32 v{vb}, v8, v3
    v_mul_f32 v{vb}, 0.15915494, v{vb}
    v_mul_f32 v{dB}, v8, v4
    v_mul_f32 v{dB+1}, v8, v5
    v_mov_b32 v{C}, v6
    v_mov_b32 v{C+1}, v7
    ''')
    cmul(a, coef, C, dB)
    def evalw(dst, e):
        if e == 1:
            a(f'v_exp_f32 v2, v{va}')
            a(f'v_fract_f32 v3, v{vb}')
        else:
            a(f'v_mul_f32 v2, {fl(float(e))}, v{va}')
            a(f'v_mul_f32 v3, {fl(float(e))}, v{vb}')
            a(f'v_exp_f32 v2, v2')
            a(f'v_fract_f32 v3, v3')
        a(f'v_cos_f32 v4, v3')
        a(f'v_sin_f32 v5, v3')
        a(f'v_mul_f32 v{dst}, v2, v4')
        a(f'v_mul_f32 v{dst+1}, v2, v5')
    evalw(E8, 8)
    evalw(E1, 1)
    evalw(W256, 256)
    fa, fb, tmp, E16 = 16, 24, 26, 28
    c0, c1 = 30, 31
    cmul(a, fb, fa, E8)
    cmul(a, E16, E8, E8)
    a('s_mov_b32 s36, 8')
    a.label(f'{name}_floop')
    a(f'v_cvt_pk_bf16_f32 v{c0}, v{fa}, v{fa+1}')
    a(f'v_cvt_pk_bf16_f32 v{c1}, v{fb}, v{fb+1}')
    cmul(a, fa, fa, E16, tmp)
    a(f'ds_write2_b32 v{vW}, v{c0}, v{c1} offset0:0 offset1:68')
    cmul(a, fb, fb, E16, tmp)
    a(f'v_cvt_pk_bf16_f32 v{c0+2}, v{fa}, v{fa+1}')
    a(f'v_cvt_pk_bf16_f32 v{c1+2}, v{fb}, v{fb+1}')
    cmul(a, fa, fa, E16, tmp)
    a(f'ds_write2_b32 v{vW}, v{c0+2}, v{c1+2} offset0:136 offset1:204')
    cmul(a, fb, fb, E16, tmp)
    a(f'v_add_u32 v{vW}, 1088, v{vW}')
    a('s_sub_u32 s36, s36, 1')
    a('s_cmp_lg_u32 s36, 0')
    a(f's_cbranch_scc1 {name}_floop')
    r2, r3, r4, r6, t0, w512, w768, w1024 = 34, 36, 38, 40, 42, 44, 46, 48
    def cv(dst, src): a(f'v_cvt_pk_bf16_f32 v{dst}, v{src}, -v{src+1}')
    def wr2(x, y, o): a(f'ds_write2_b32 v{vW}, v{x}, v{y} offset0:{o} offset1:{o+68}')
    def nxt(): a(f'v_add_u32 v{vW}, 1088, v{vW}')
    q0, q1 = 30, 31
    a(f'v_mov_b32 v{q0}, 0x3f80')
    cv(q1, E1); wr2(q0, q1, 0)
    cmul(a, r2, E1, E1); cmul(a, r3, r2, E1)
    cv(q0 + 2, r2); cv(q1 + 2, r3); wr2(q0 + 2, q1 + 2, 136); nxt()
    cmul(a, r4, r2, r2); cmul(a, t0, r4, E1)
    cv(q0, r4); cv(q1, t0); wr2(q0, q1, 0)
    cmul(a, r6, r4, r2); cmul(a, t0, r4, r3)
    cv(q0 + 2, r6); cv(q1 + 2, t0); wr2(q0 + 2, q1 + 2, 136); nxt()
    cmul(a, t0, W256, r2)
    cv(q0, W256); cv(q1, t0); wr2(q0, q1, 0)
    cmul(a, t0, W256, r4); cmul(a, r3, W256, r6)
    cv(q0 + 2, t0); cv(q1 + 2, r3); wr2(q0 + 2, q1 + 2, 136); nxt()
    cmul(a, w512, W256, W256); cmul(a, t0, w512, r4)
    cv(q0, w512); cv(q1, t0); wr2(q0, q1, 0)
    cmul(a, w768, w512, W256); cmul(a, t0, w768, r4)
    cv(q0 + 2, w768); cv(q1 + 2, t0); wr2(q0 + 2, q1 + 2, 136); nxt()
    cmul(a, w1024, w512, w512); cmul(a, t0, w1024, W256)
    cv(q0, w1024); cv(q1, t0); wr2(q0, q1, 0)
    cmul(a, t0, w1024, w512); cmul(a, r3, w1024, w768)
    cv(q0 + 2, t0); cv(q1 + 2, r3); wr2(q0 + 2, q1 + 2, 136); nxt()
    cmul(a, t0, w1024, w1024)
    cv(q0, t0)
    a(f'ds_write_b32 v{vW}, v{q0}')
    acc, FA, FB = 68, 84, 100
    for half in range(2):
        for k in range(4):
            ks = 4 * half + k
            a(f'ds_read_b128 {vr(FA+4*k,4)}, v{vRA} offset:{32*ks}')
            a(f'ds_read_b128 {vr(FB+4*k,4)}, v{vFB} offset:{32*ks}')
        for k in range(4):
            a(f's_waitcnt lgkmcnt({6-2*k})')
            c = '0' if (half == 0 and k == 0) else vr(acc, 16)
            a(f'v_mfma_f32_32x32x16_bf16 {vr(acc,16)}, {vr(FA+4*k,4)}, {vr(FB+4*k,4)}, {c}')
    for g in range(3):
        a(f'ds_write_b128 v{vP}, {vr(acc+4*g,4)} offset:{1024*g}')
    a('s_waitcnt lgkmcnt(0)')
    a('s_barrier')
    a(f'''
    s_cmp_eq_u32 s6, 3
    s_cbranch_scc1 {name}_kred_done
    s_lshl_b32 s33, s6, 10
    s_add_u32 s33, s33, s30
    v_lshl_add_u32 v2, v0, 4, s33
    ds_read_b128 v[4:7], v2
    ds_read_b128 v[8:11], v2 offset:{K1_KREG}
    ds_read_b128 v[12:15], v2 offset:{2*K1_KREG}
    ds_read_b128 v[16:19], v2 offset:{3*K1_KREG}
    v_and_b32 v20, 31, v0
    v_mul_u32_u24 v20, 80, v20
    v_lshrrev_b32 v21, 5, v0
    v_lshl_add_u32 v20, v21, 3, v20
    s_lshl_b32 s33, s6, 4
    s_add_u32 s33, s33, s31
    v_add_u32 v20, s33, v20
    s_waitcnt lgkmcnt(2)
    v_pk_add_f32 v[4:5], v[4:5], v[8:9]
    v_pk_add_f32 v[6:7], v[6:7], v[10:11]
    s_waitcnt lgkmcnt(0)
    v_pk_add_f32 v[12:13], v[12:13], v[16:17]
    v_pk_add_f32 v[14:15], v[14:15], v[18:19]
    v_pk_add_f32 v[4:5], v[4:5], v[12:13]
    v_pk_add_f32 v[6:7], v[6:7], v[14:15]
    v_cvt_pk_bf16_f32 v4, v4, v5
    v_cvt_pk_bf16_f32 v5, v6, v7
    ds_write_b64 v20, v[4:5]
    s_waitcnt lgkmcnt(0)
    ''')
    a.label(f'{name}_kred_done')
    a('s_barrier')
    a(f'''
    s_mov_b32 s40, 0x01000100
    s_mov_b32 s41, 0x03020302
    s_mov_b32 s42, 0x05040302
    s_mov_b32 s43, 0x05040100
    ds_read_u16 v9, v{vA8}
    s_cmp_eq_u32 s6, 0
    s_cbranch_scc1 {name}_kx0
    s_cmp_eq_u32 s6, 1
    s_cbranch_scc1 {name}_kx1
    ; ---- segment 3: (a,a),(a,a),(x,b),(b,b)
    ds_read_u16 v8, v{vA0}
    v_and_b32 v10, 1, v0
    v_cmp_eq_u32 vcc, 1, v10
    s_waitcnt lgkmcnt(0)
    v_perm_b32 v4, v8, v8, s40
    v_cndmask_b32 v10, v8, v9, vcc
    v_perm_b32 v7, v9, v9, s40
    v_mov_b32 v5, v4
    v_perm_b32 v6, v9, v10, s43
    s_branch {name}_kxs
    ''')
    a.label(f'{name}_kx1')
    a(f'''
    ; ---- segment 2: (a,a),(a,b),(b,b),(c,c)
    ds_read_b32 v8, v{vA0}
    s_waitcnt lgkmcnt(0)
    v_perm_b32 v4, v8, v8, s40
    v_mov_b32 v5, v8
    v_perm_b32 v6, v8, v8, s41
    v_perm_b32 v7, v9, v9, s40
    s_branch {name}_kxs
    ''')
    a.label(f'{name}_kx0')
    a(f'''
    ; ---- segments 0 / 1
    ds_read_b128 v[12:15], v{vA0}
    v_cmp_gt_u32 vcc, 32, v0
    s_waitcnt lgkmcnt(0)
    v_perm_b32 v4, v12, v12, s40      ; (v0,v0)
    v_perm_b32 v5, v13, v12, s42      ; (v2,v4)
    v_perm_b32 v6, v13, v13, s40      ; (v4,v4)
    v_perm_b32 v7, v9, v13, s42       ; (v6,v8)
    v_cndmask_b32 v4, v4, v12, vcc
    v_cndmask_b32 v5, v5, v13, vcc
    v_cndmask_b32 v6, v6, v14, vcc
    v_cndmask_b32 v7, v7, v15, vcc
    ''')
    a.label(f'{name}_kxs')
    a(f'''
    s_lshl_b32 s33, s5, 12
    s_lshl_b32 s34, s6, 10
    s_add_u32 s33, s33, s34
    s_add_u32 s33, s33, {WS_KX}
    v_lshl_add_u32 v2, v0, 4, s33
    global_store_dwordx4 v2, v[4:7], s[24:25]
    s_endpgm
    ''')

def b1(a, name):
    a.label(f'{name}_b1')
    a(f'''
    s_load_dwordx2 s[8:9], s[0:1], {KA['u']}
    s_load_dwordx2 s[10:11], s[0:1], {KA['gate_w']}
    s_load_dwordx2 s[24:25], s[0:1], {KA['ws']}
    s_sub_u32 s4, s3, 8
    s_and_b32 s5, s4, 1
    s_lshl_b32 s6, s2, 1
    s_add_u32 s5, s5, s6              ; b
    s_lshr_b32 s6, s4, 1              ; kt
    s_mul_i32 s7, s4, {K1_B1REG}
    s_add_u32 s7, s7, {K1_B1BASE}     ; LB
    s_mul_i32 s26, s5, {4*896}
    v_lshl_add_u32 v1, v0, 4, s26
    v_lshlrev_b32 v2, 4, v0
    s_waitcnt lgkmcnt(0)
    ''')
    srd(a, 12, 8, XBYTES)
    srd(a, 16, 10, 896)
    for r in range(4):
        a(f's_add_u32 m0, s7, {1056*r}')
        a(f's_mov_b32 s27, {896*r}')
        a(f'buffer_load_dwordx4 v1, s[12:15], s27 offen lds')
    a(f's_add_u32 m0, s7, {1056*4}')
    a(f'buffer_load_dwordx4 v2, s[16:19], 0 offen lds')
    Cf, Sf, WR, WI = 4, 12, 20, 28
    kf, base, a0, a1, c0, c1 = 36, 37, 38, 39, 40, 41
    a(f'''
    v_and_b32 v3, 15, v0
    s_lshl_b32 s27, s6, 4
    v_add_u32 v3, s27, v3                 ; kappa
    v_cvt_f32_u32 v42, v3
    v_mul_f32 v{kf}, {fl(1/56)}, v42
    v_lshrrev_b32 v43, 4, v0              ; q
    v_cvt_f32_u32 v44, v43
    v_mul_f32 v44, {fl(8.0)}, v44
    v_mul_f32 v{base}, v{kf}, v44
    ''')
    for ks in range(2):
        for jj in range(4):
            k0 = 32 * ks + 2 * jj
            a(f'v_fmamk_f32 v{a0}, v{kf}, {fl(float(k0))}, v{base}')
            a(f'v_fmamk_f32 v{a1}, v{kf}, {fl(float(k0+1))}, v{base}')
            a(f'v_cos_f32 v{c0}, v{a0}')
            a(f'v_cos_f32 v{c1}, v{a1}')
            a(f'v_sin_f32 v{a0}, v{a0}')
            a(f'v_sin_f32 v{a1}, v{a1}')
            a(f'v_cvt_pk_bf16_f32 v{Cf+4*ks+jj}, v{c0}, v{c1}')
            a(f'v_cvt_pk_bf16_f32 v{Sf+4*ks+jj}, -v{a0}, -v{a1}')
    a('v_cmp_ne_u32 vcc, 3, v43')
    for jj in range(4):
        a(f'v_cndmask_b32 v{Cf+4+jj}, 0, v{Cf+4+jj}, vcc')
        a(f'v_cndmask_b32 v{Sf+4+jj}, 0, v{Sf+4+jj}, vcc')
    a(f'v_mul_f32 v{kf}, {fl(-1/448)}, v42')
    a(f'v_mov_b32 v{WR}, 1.0')
    a(f'v_mov_b32 v{WI}, 0')
    for d0 in range(1, 8):
        a(f'v_mul_f32 v{a0}, {fl(float(d0))}, v{kf}')
        a(f'v_cos_f32 v{WR+d0}, v{a0}')
        a(f'v_sin_f32 v{WI+d0}, v{a0}')
    vT, vG = 45, 46
    a(f'''
    v_and_b32 v47, 3, v0                  ; c'
    v_bfe_u32 v48, v0, 2, 2               ; r'
    v_lshlrev_b32 v49, 7, v43             ; 128 q
    v_lshl_add_u32 v49, v48, 4, v49       ; + 16 r'
    v_add_u32 v49, s7, v49
    v_mul_u32_u24 v50, 1056, v47
    v_add_u32 v{vT}, v49, v50
    v_and_b32 v50, 1, v47
    v_lshl_add_u32 v{vG}, v50, 3, v49
    ''')
    FA = 48
    GB = 64
    a('s_waitcnt vmcnt(0)')
    for tile in range(2):
        for ks in range(2):
            for rd in range(2):
                a(f'ds_read_b64_tr_b16 {vr(FA+8*tile+4*ks+2*rd,2)}, v{vT} offset:{512*ks+64*rd+8*tile}')
    for ks in range(2):
        for rd in range(2):
            a(f'ds_read_b64_tr_b16 {vr(GB+4*ks+2*rd,2)}, v{vG} offset:{4*1056+512*ks+64*rd}')
    aC, aS, aG = 72, 80, 88
    a('s_waitcnt lgkmcnt(4)')
    for tile in range(2):
        for ks in range(2):
            c = '0' if ks == 0 else vr(aC + 4 * tile, 4)
            a(f'v_mfma_f32_16x16x32_bf16 {vr(aC+4*tile,4)}, {vr(FA+8*tile+4*ks,4)}, {vr(Cf+4*ks,4)}, {c}')
            c = '0' if ks == 0 else vr(aS + 4 * tile, 4)
            a(f'v_mfma_f32_16x16x32_bf16 {vr(aS+4*tile,4)}, {vr(FA+8*tile+4*ks,4)}, {vr(Sf+4*ks,4)}, {c}')
    a('s_waitcnt lgkmcnt(0)')
    for tile in range(2):
        for ks in range(2):
            c = '0' if ks == 0 else vr(aG + 4 * tile, 4)
            a(f'v_mfma_f32_16x16x32_bf16 {vr(aG+4*tile,4)}, {vr(FA+8*tile+4*ks,4)}, {vr(GB+4*ks,4)}, {c}')
    t0, t1 = 96, 98
    zr = [aC, aC + 2, aC + 4, aC + 6]; zi = [aS, aS + 2, aS + 4, aS + 6]
    for p in range(4):
        a(f'v_pk_mul_f32 {pair(t0)}, {pair(zi[p])}, {pair(WI+2*p)}')
        a(f'v_pk_mul_f32 {pair(t1)}, {pair(zr[p])}, {pair(WI+2*p)}')
        a(f'v_pk_fma_f32 {pair(zr[p])}, {pair(zr[p])}, {pair(WR+2*p)}, {pair(t0)} neg_lo:[0,0,1] neg_hi:[0,0,1]')
        a(f'v_pk_fma_f32 {pair(zi[p])}, {pair(zi[p])}, {pair(WR+2*p)}, {pair(t1)}')
    res = radix8(a, zr, zi, 100, None, inverse=False)
    O = 48
    for m in range(8):
        a(f'v_cvt_pk_bf16_f32 v{O+m}, v{res[m][0]}, v{res[m][1]}')
    a(f'''
    v_and_b32 v2, 15, v0
    v_lshlrev_b32 v2, 4, v2
    v_lshl_add_u32 v2, v43, 2, v2
    v_add_u32 v2, s7, v2
    ''')
    for m in range(8):
        a(f'ds_write_b32 v2, v{O+m} offset:{256*m}')
    a(f'''
    v_lshl_add_u32 v2, v0, 4, s7
    ds_read_b128 v[56:59], v2
    ds_read_b128 v[60:63], v2 offset:1024
    s_lshl_b32 s26, s5, 12
    s_lshl_b32 s27, s6, 11
    s_add_u32 s26, s26, s27
    s_add_u32 s26, s26, {WS_X1}
    v_lshl_add_u32 v3, v0, 4, s26
    s_waitcnt lgkmcnt(1)
    global_store_dwordx4 v3, v[56:59], s[24:25]
    s_waitcnt lgkmcnt(0)
    global_store_dwordx4 v3, v[60:63], s[24:25] offset:1024
    s_cmp_lg_u32 s6, 0
    s_cbranch_scc1 {name}_end
    ''')
    a(f'v_mov_b32 v2, v{aG}')
    for k in range(1, 8):
        a(f'v_add_f32_dpp v2, v{aG+k}, v2 row_shl:{k} row_mask:0xf bank_mask:0xf')
    a(f'''
    v_cvt_pk_bf16_f32 v2, v2, v2
    v_lshlrev_b32 v2, 16, v2
    v_mul_f32 v2, {fl(-math.log2(math.e))}, v2
    v_exp_f32 v2, v2
    v_add_f32 v2, 1.0, v2
    v_rcp_f32 v2, v2
    v_cvt_pk_bf16_f32 v2, v2, v2
    v_lshlrev_b32 v2, 16, v2
    s_lshl_b32 s26, s5, 4
    s_add_u32 s26, s26, {WS_GT}
    v_lshl_add_u32 v3, v43, 2, s26
    v_and_b32 v4, 15, v0
    v_cmp_eq_u32 vcc, 0, v4
    s_and_saveexec_b64 s[28:29], vcc
    global_store_dword v3, v2, s[24:25]
    s_endpgm
    ''')

def trole(a, name):
    a.label(f'{name}_t')
    a(f'''
    s_load_dwordx2 s[8:9], s[0:1], {KA['u']}
    s_load_dwordx4 s[16:19], s[0:1], {KA['w_r']}
    s_load_dwordx2 s[24:25], s[0:1], {KA['ws']}
    s_sub_u32 s4, s3, 12                 ; v
    s_mul_i32 s7, s4, {K1_TREG}
    s_add_u32 s7, s7, {K1_TBASE}         ; TB
    ; ---- W indices
    s_and_b32 s5, s2, 1                  ; half
    s_lshr_b32 s6, s2, 1                 ; pg
    s_lshr_b32 s26, s6, 5                ; w_
    s_bfe_u32 s27, s6, 0x20003           ; g_ = (pg>>3)&3
    s_and_b32 s28, s6, 7                 ; a_
    s_lshl_b32 s29, s28, 1
    s_lshl_b32 s30, s26, 4
    s_add_u32 s29, s29, s30
    s_lshl_b32 s30, s27, 8
    s_add_u32 s29, s29, s30              ; P0
    s_lshl_b32 s30, s5, 2
    s_add_u32 s30, s30, s4               ; m
    s_mul_i32 s31, s30, 56
    v_and_b32 v2, 31, v0                 ; kappa
    v_lshrrev_b32 v3, 5, v0              ; T
    v_lshlrev_b32 v4, 10, v3
    v_add_u32 v4, s29, v4                ; vp
    s_cmp_eq_u32 s5, 0
    s_cbranch_scc1 {name}_wdir
    v_sub_u32 v4, 2048, v4
    s_sub_u32 s31, 448, s31
    v_sub_u32 v5, s31, v2                ; kcol
    s_mov_b32 s33, -450
    s_mov_b32 s34, 0x80000000
    s_branch {name}_wcom
    ''')
    a.label(f'{name}_wdir')
    a(f'''
    v_add_u32 v5, s31, v2
    s_mov_b32 s33, 450
    s_mov_b32 s34, 0
    ''')
    a.label(f'{name}_wcom')
    a(f'''
    s_movk_i32 s35, 450
    v_lshlrev_b32 v5, 1, v5
    v_mad_u32_u24 v6, v4, s35, v5        ; offB
    v_and_b32 v4, 2047, v4
    v_mad_u32_u24 v7, v4, s35, v5
    s_waitcnt lgkmcnt(0)
    ''')
    WR_, WI_ = 8, 16
    for cc in range(2):
        for t in range(4):
            dl = cc + 64 * t
            i = 4 * cc + t
            if dl == 0:
                ad = 7
            else:
                a(f's_mul_i32 s36, s33, {dl}')
                a(f'v_add_u32 v24, s36, v6')
                ad = 24
            a(f'global_load_ushort v{WR_+i}, v{ad}, s[16:17]')
            a(f'global_load_ushort v{WI_+i}, v{ad}, s[18:19]')
    a(f'''
    s_cmp_ge_u32 s2, 224
    s_cbranch_scc1 {name}_w_only
    s_mul_hi_u32 s37, s2, 613566757      ; lt = i/7
    s_mul_i32 s38, s37, 7
    s_sub_u32 s38, s2, s38               ; dt
    ''')
    srd(a, 12, 8, XBYTES)
    a(f'''
    s_lshl_b32 s39, s38, 7
    s_lshl_b32 s40, s4, 5
    s_add_u32 s39, s39, s40              ; 128 dt + 32 v
    s_lshl_b32 s40, s37, 6               ; l0
    s_add_u32 s41, s40, 63
    v_lshrrev_b32 v25, 1, v0
    v_sub_u32 v25, s41, v25              ; l = l0+63-iota
    v_mul_u32_u24 v25, 896, v25
    v_and_b32 v26, 1, v0
    v_lshl_add_u32 v25, v26, 4, v25
    v_add_u32 v25, s39, v25
    s_mov_b32 m0, s7
    v_subrev_u32 v27, {32*896}, v25
    buffer_load_dwordx4 v25, s[12:15], 0 offen lds
    s_add_u32 m0, s7, 1024
    s_sub_u32 s41, s40, 1
    s_mul_i32 s41, s41, 896
    buffer_load_dwordx4 v27, s[12:15], 0 offen lds
    s_add_u32 s41, s41, s39
    s_cmp_eq_u32 s37, 0
    s_cselect_b32 s41, 0x70000000, s41
    v_lshl_add_u32 v27, v26, 4, s41
    s_add_u32 m0, s7, 2048
    s_mov_b64 exec, 3
    buffer_load_dwordx4 v27, s[12:15], 0 offen lds
    s_mov_b64 exec, -1
    v_lshrrev_b32 v28, 4, v0             ; G
    v_bfe_u32 v29, v0, 2, 2              ; r'
    v_lshl_add_u32 v29, v28, 3, v29
    v_lshlrev_b32 v29, 5, v29
    v_and_b32 v30, 3, v0
    v_lshl_add_u32 v29, v30, 3, v29
    v_add_u32 v29, s7, v29               ; vTR
    v_and_b32 v30, 15, v0
    v_mul_u32_u24 v30, 144, v30
    v_lshl_add_u32 v30, v28, 4, v30
    s_add_u32 s42, s7, 2080
    v_add_u32 v30, s42, v30              ; vSW
    v_lshrrev_b32 v31, 3, v0
    v_and_b32 v32, 7, v0
    v_mul_u32_u24 v33, 144, v31
    v_lshl_add_u32 v33, v32, 4, v33
    v_add_u32 v33, s42, v33              ; vSR
    s_lshr_b32 s43, s39, 1               ; 64dt+16v
    v_add_u32 v31, s43, v31
    v_mul_u32_u24 v31, {XT_STRIDE}, v31
    v_lshl_add_u32 v31, v32, 4, v31
    s_sub_u32 s44, 31, s37
    s_lshl_b32 s44, s44, 7
    v_add_u32 v31, s44, v31              ; vG
    s_waitcnt vmcnt(0)
    ''')
    R = 36
    for ver in range(2):
        for h in range(2):
            for rd in range(2):
                a(f'ds_read_b64_tr_b16 {vr(R+8*ver+4*h+2*rd,2)}, v29 offset:{1024*h+128*rd+32*ver}')
    for ver in range(2):
        a(f's_waitcnt lgkmcnt({4 if ver == 0 else 0})')
        for h in range(2):
            a(f'ds_write_b128 v30, {vr(R+8*ver+4*h,4)} offset:{64*h}')
        for hh in range(2):
            a(f'ds_read_b128 {vr(R+16+4*hh,4)}, v33 offset:{8*144*hh}')
        off = WS_XT0 if ver == 0 else WS_XT1
        a(f's_add_u32 s46, s24, {off}')
        a(f's_addc_u32 s47, s25, 0')
        a(f'v_add_u32 v34, {8*XT_STRIDE}, v31')
        a('s_waitcnt lgkmcnt(1)')
        a(f'global_store_dwordx4 v31, {vr(R+16,4)}, s[46:47]')
        a('s_waitcnt lgkmcnt(0)')
        a(f'global_store_dwordx4 v34, {vr(R+20,4)}, s[46:47]')
    a(f'''
    s_cmp_lg_u32 s37, 0
    s_cbranch_scc1 {name}_wpack
    v_and_b32 v34, 15, v0
    v_add_u32 v34, s43, v34
    v_mul_u32_u24 v34, {XT_STRIDE}, v34
    v_bfe_u32 v35, v0, 4, 1
    v_mul_u32_u24 v35, {WS_XT1-WS_XT0}, v35
    v_add_u32 v34, v34, v35
    v_add_u32 v34, {WS_XT0+4096}, v34
    v_mov_b32 v60, 0
    v_mov_b32 v61, 0
    v_mov_b32 v62, 0
    v_mov_b32 v63, 0
    s_mov_b32 exec_hi, 0
    global_store_dwordx4 v34, v[60:63], s[24:25]
    s_mov_b64 exec, -1
    s_branch {name}_wpack
    ''')
    a.label(f'{name}_w_only')
    a('s_waitcnt vmcnt(0)')
    a.label(f'{name}_wpack')
    P = 64
    for i in range(8):
        a(f'v_lshl_or_b32 v{P+i}, v{WI_+i}, 16, v{WR_+i}')
        a(f'v_xor_b32 v{P+i}, s34, v{P+i}')
    a(f'''
    v_mul_u32_u24 v2, 80, v2
    v_lshl_add_u32 v2, v3, 5, v2
    v_add_u32 v2, s7, v2
    ds_write_b128 v2, v[{P}:{P+3}]
    ds_write_b128 v2, v[{P+4}:{P+7}] offset:16
    v_lshrrev_b32 v4, 2, v0
    v_and_b32 v5, 3, v0
    v_mul_u32_u24 v6, 80, v4
    v_lshl_add_u32 v6, v5, 4, v6
    v_add_u32 v6, s7, v6
    ds_read_b128 v[8:11], v6
    ds_read_b128 v[12:15], v6 offset:{16*80}
    s_lshl_b32 s36, s30, 18
    s_lshl_b32 s37, s26, 11
    s_add_u32 s36, s36, s37
    s_lshl_b32 s37, s27, 9
    s_add_u32 s36, s36, s37
    s_lshl_b32 s37, s28, 6
    s_add_u32 s36, s36, s37
    s_add_u32 s36, s36, {WS_WT}
    v_lshlrev_b32 v4, 13, v4
    v_lshl_add_u32 v4, v5, 4, v4
    v_add_u32 v4, s36, v4
    v_add_u32 v5, {16*8192}, v4
    s_waitcnt lgkmcnt(1)
    global_store_dwordx4 v4, v[8:11], s[24:25]
    s_waitcnt lgkmcnt(0)
    global_store_dwordx4 v5, v[12:15], s[24:25]
    s_endpgm
    ''')
```

```python
from common import *
GRID = 224 + 232
BLOCK = 256
UC = 4160
DREG = 4 * UC + 4608
RB = 2 * DREG
LDS = RB + 4 * 4096
VGPR = 168

def gen_k2(name):
    a = Asm()
    a(f'''
    s_cmp_ge_u32 s2, {GRID}
    s_cbranch_scc1 {name}_end
    v_lshrrev_b32 v1, 6, v0
    v_and_b32 v0, 63, v0
    v_readfirstlane_b32 s3, v1
    s_load_dwordx2 s[24:25], s[0:1], {KA['ws']}
    s_cmp_ge_u32 s2, 224
    s_cbranch_scc1 {name}_b2
    ''')
    conv(a, name)
    b2(a, name)
    a.label(f'{name}_end')
    a('s_endpgm')
    return a

def conv(a, name):
    a(f'''
    s_load_dwordx2 s[8:9], s[0:1], {KA['Dskip']}
    s_lshr_b32 s4, s3, 1              ; dl
    s_and_b32 s5, s3, 1               ; hf
    s_lshl_b32 s6, s2, 1
    s_add_u32 s6, s6, s4              ; d
    s_mul_i32 s7, s4, {DREG}          ; DB
    s_lshl_b32 s28, s2, 2
    v_lshlrev_b32 v1, 4, v0           ; 16*lane
    s_mul_i32 s26, s6, {XT_STRIDE}
    s_lshl_b32 s27, s5, 2
    s_add_u32 s26, s26, s27
    s_lshl_b32 s29, s5, 1
    s_mul_i32 s29, s29, {UC}
    s_add_u32 s29, s29, s7
    s_waitcnt lgkmcnt(0)
    s_load_dword s30, s[8:9], s28
    ''')
    srd(a, 12, 24, WS_END)
    for j in range(2):
        for k in range(4):
            a(f's_add_u32 s31, s26, {(WS_XT0 if j == 0 else WS_XT1) + 1024*k}')
            a(f's_add_u32 m0, s29, {UC*j + 1024*k}')
            a(f'buffer_load_dwordx4 v1, s[12:15], s31 offen lds')
    a(f'''
    s_lshl_b32 s26, s6, 12
    s_lshl_b32 s27, s5, 11
    s_add_u32 s26, s26, s27
    s_add_u32 s27, s27, s7
    ''')
    for k in range(2):
        a(f's_add_u32 s31, s26, {WS_KX + 1024*k}')
        a(f's_add_u32 m0, s27, {4*UC + 512 + 1024*k}')
        a(f'buffer_load_dwordx4 v1, s[12:15], s31 offen lds')
    a(f'''
    v_mov_b32 v4, 0
    v_mov_b32 v5, 0
    v_mov_b32 v6, 0
    v_mov_b32 v7, 0
    s_cmp_eq_u32 s5, 0
    s_cbranch_scc0 {name}_cz1
    s_add_u32 s31, s7, {4*UC}
    v_add_u32 v2, s31, v1
    s_mov_b32 exec_hi, 0
    ds_write_b128 v2, v[4:7]
    s_mov_b64 exec, -1
    s_branch {name}_cz2
    ''')
    a.label(f'{name}_cz1')
    a(f'''
    v_lshrrev_b32 v2, 1, v0
    v_mul_u32_u24 v2, {UC}, v2
    v_and_b32 v3, 1, v0
    v_lshl_add_u32 v2, v3, 4, v2
    s_add_u32 s31, s7, 4096
    v_add_u32 v2, s31, v2
    s_mov_b64 exec, 0xff
    ds_write_b128 v2, v[4:7]
    s_mov_b64 exec, -1
    ''')
    a.label(f'{name}_cz2')
    acc, UF, KF = 64, 96, 32
    vU, vK = 8, 9
    a(f'''
    v_and_b32 v10, 15, v0             ; c
    v_lshrrev_b32 v11, 4, v0          ; q
    v_lshrrev_b32 v12, 1, v11         ; q>>1
    v_and_b32 v13, 1, v11             ; q&1
    v_lshlrev_b32 v14, 4, v13
    v_lshlrev_b32 v15, 5, v12
    v_sub_u32 v14, v14, v15           ; 16(q&1) - 32(q>>1)
    v_and_b32 v15, 3, v10
    v_sub_u32 v15, 3, v15             ; sigma
    v_mul_u32_u24 v15, {UC}, v15
    v_lshrrev_b32 v16, 2, v10
    v_lshlrev_b32 v16, 3, v16
    v_sub_u32 v15, v15, v16
    v_add_u32 v15, v15, v14
    s_lshl_b32 s31, s5, 8             ; 64*rho0
    s_sub_u32 s33, s7, s31
    s_add_u32 s34, s33, {4088 - 3584}
    v_add_u32 v{vU}, s34, v15
    v_lshl_add_u32 v16, v10, 5, v14
    s_add_u32 s34, s33, {4*UC + 512}
    v_add_u32 v{vK}, s34, v16
    ''')
    for r in range(32):
        a(f'v_mov_b32 v{acc+r}, 0')
    a('s_waitcnt vmcnt(0) lgkmcnt(0)')
    a('s_barrier')
    a('s_mov_b32 s35, 4')
    a.label(f'{name}_cloop')
    def ld(k):
        a(f'ds_read_b128 {vr(KF+4*k,4)}, v{vK} offset:{512*k}')
        a(f'ds_read_b64 {vr(UF+4*k,2)}, v{vU} offset:{512*(7-k)}')
        a(f'ds_read_b64 {vr(UF+4*k+2,2)}, v{vU} offset:{512*(7-k)+8}')
    def mm(nu, e):
        mt = nu + e
        a(f'v_mfma_f32_16x16x32_bf16 {vr(acc+4*mt,4)}, {vr(UF+4*nu,4)}, {vr(KF+4*e,4)}, {vr(acc+4*mt,4)}')
    for k in range(5): ld(k)
    for k in range(8):
        a(f's_waitcnt lgkmcnt({12 if k <= 3 else 3*(7-k)})')
        prs = []
        for o in range(k + 1):
            if k + o <= 7:
                prs.append((k, o))
                if o != k: prs.append((o, k))
        prs.sort(key=lambda p: (min(p), p[0]))
        for (nu, e) in prs: mm(nu, e)
        if k + 5 <= 7: ld(k + 5)
    a(f'''
    v_subrev_u32 v{vU}, 64, v{vU}
    v_subrev_u32 v{vK}, 64, v{vK}
    s_sub_u32 s35, s35, 1
    s_cmp_lg_u32 s35, 0
    s_cbranch_scc1 {name}_cloop
    ''')
    a(f'''
    s_lshl_b32 s31, s3, 12
    s_add_u32 s31, s31, {RB}
    v_add_u32 v2, s31, v1
    s_xor_b32 s33, s3, 1
    s_lshl_b32 s33, s33, 12
    s_add_u32 s33, s33, {RB}
    v_add_u32 v3, s33, v1
    s_cmp_eq_u32 s5, 0
    s_cbranch_scc0 {name}_cx1
    ''')
    for k in range(4): a(f'ds_write_b128 v2, {vr(acc+16+4*k,4)} offset:{1024*k}')
    a(f's_branch {name}_cx2')
    a.label(f'{name}_cx1')
    for k in range(4): a(f'ds_write_b128 v2, {vr(acc+4*k,4)} offset:{1024*k}')
    a('s_waitcnt lgkmcnt(0)')
    for r in range(16): a(f'v_mov_b32 v{acc+r}, v{acc+16+r}')
    a.label(f'{name}_cx2')
    a(f'''
    v_lshlrev_b32 v16, 5, v10
    v_lshl_add_u32 v16, v11, 3, v16       ; 32c + 8g
    s_lshl_b32 s34, s5, 11                ; 2048*hf
    s_sub_u32 s36, s7, s34
    s_add_u32 s36, s36, {4088 - 1536}
    v_sub_u32 v17, s36, v16
    s_lshl_b32 s36, s6, 12
    s_add_u32 s36, s36, s34
    s_add_u32 s36, s36, {WS_AT}
    v_add_u32 v18, s36, v16
    s_waitcnt lgkmcnt(0)
    s_lshl_b32 s37, s30, 16
    s_and_b32 s38, s30, 0xffff0000
    s_cmp_eq_u32 s4, 0
    s_cselect_b32 s37, s37, s38           ; Dskip f32
    s_barrier
    ''')
    for k in range(4):
        a(f'ds_read_b128 {vr(32+4*k,4)}, v3 offset:{1024*k}')
        a(f'ds_read_b64 {vr(48+2*k,2)}, v17 offset:{512*(3-k)}')
    for k in range(4):
        a(f's_waitcnt lgkmcnt({6-2*k})')
        y = acc + 4 * k
        a(f'v_pk_add_f32 {pair(y)}, {pair(y)}, {pair(32+4*k)}')
        a(f'v_pk_add_f32 {pair(y+2)}, {pair(y+2)}, {pair(34+4*k)}')
        d0, d1 = 48 + 2 * k, 49 + 2 * k
        a(f'v_and_b32 v20, 0xffff0000, v{d1}')
        a(f'v_lshlrev_b32 v21, 16, v{d1}')
        a(f'v_and_b32 v22, 0xffff0000, v{d0}')
        a(f'v_lshlrev_b32 v23, 16, v{d0}')
        for t in range(4):
            a(f'v_fmac_f32 v{y+t}, s37, v{20+t}')
        a(f'v_cvt_pk_bf16_f32 v{24+2*k}, v{y}, v{y+1}')
        a(f'v_cvt_pk_bf16_f32 v{25+2*k}, v{y+2}, v{y+3}')
        a(f'global_store_dwordx2 v18, {vr(24+2*k,2)}, s[24:25] offset:{512*k}')
    a('s_endpgm')

def b2(a, name):
    a.label(f'{name}_b2')
    a(f'''
    s_sub_u32 s4, s2, 224
    s_and_b32 s5, s4, 7               ; m
    s_lshr_b32 s6, s4, 3              ; kappa
    s_lshl_b32 s7, s5, 5
    s_add_u32 s7, s7, s6              ; col
    s_lshr_b32 s26, s6, 4
    s_lshl_b32 s26, s26, 7
    s_lshl_b32 s27, s5, 4
    s_add_u32 s26, s26, s27
    s_and_b32 s27, s6, 15
    s_add_u32 s26, s26, s27
    s_lshl_b32 s26, s26, 4            ; pos*16
    v_lshrrev_b32 v2, 5, v0
    v_lshlrev_b32 v2, 2, v2
    v_xor_b32 v2, v2, v0
    v_lshlrev_b32 v2, 12, v2
    v_and_b32 v10, 15, v0             ; c
    v_lshrrev_b32 v11, 4, v0          ; q / g
    ; W address
    v_lshrrev_b32 v3, 1, v10
    v_lshlrev_b32 v3, 6, v3
    v_and_b32 v4, 1, v10
    v_lshl_add_u32 v3, v4, 4, v3
    v_lshl_add_u32 v3, v11, 9, v3
    s_lshl_b32 s28, s7, 13
    s_lshl_b32 s29, s3, 11
    s_add_u32 s29, s29, s28
    s_add_u32 s29, s29, {WS_WT}
    v_add_u32 v3, s29, v3
    s_waitcnt lgkmcnt(0)
    ''')
    srd(a, 12, 24, WS_END)
    for k in range(2):
        a(f's_lshl_b32 s30, s3, 1')
        a(f's_add_u32 s30, s30, {k}')
        a(f's_lshl_b32 m0, s30, 10')
        a(f's_lshl_b32 s31, s30, 18')
        a(f's_add_u32 s31, s31, s26')
        a(f's_add_u32 s31, s31, {WS_X1}')
        a(f'buffer_load_dwordx4 v2, s[12:15], s31 offen lds')
    Wv = 12
    a(f'global_load_dwordx4 {vr(Wv,4)}, v3, s[24:25]')
    a(f'global_load_dwordx4 {vr(Wv+4,4)}, v3, s[24:25] offset:32')
    Bre, Bim = 32, 48
    Are, Aim = 64, 80
    TW1r, TW1i, TW2r, TW2i = 96, 104, 112, 120
    pf, base, an, cs, sn = 20, 21, 22, 23, 24
    a(f'''
    s_lshl_b32 s30, s3, 4
    v_add_u32 v25, s30, v10           ; p1 = 16v+c
    v_cvt_f32_u32 v26, v25
    v_cvt_f32_u32 v27, v11            ; q
    v_mul_f32 v28, 4.0, v27           ; 4q
    v_mul_f32 v{pf}, {fl(1/64)}, v26
    v_mul_f32 v{base}, v{pf}, v28
    ''')
    def trig(dre, dim):
        a(f'v_cos_f32 v{cs}, v{an}')
        a(f'v_sin_f32 v{sn}, v{an}')
        a(f'v_cvt_pk_bf16_f32 v{dre}, v{cs}, v{sn}')
        a(f'v_cvt_pk_bf16_f32 v{dim}, -v{sn}, v{cs}')
    for ks in range(4):
        for t in range(4):
            a(f'v_fmamk_f32 v{an}, v{pf}, {fl(float(16*ks+t))}, v{base}')
            trig(Bre + 4 * ks + t, Bim + 4 * ks + t)
    for T2 in range(2):
        a(f'v_cvt_f32_u32 v29, v10')
        if T2: a(f'v_add_f32 v29, {fl(16.0)}, v29')
        a(f'v_mul_f32 v{pf}, {fl(1/32)}, v29')
        a(f'v_mul_f32 v{base}, v{pf}, v28')
        for ks in range(2):
            for t in range(4):
                a(f'v_fmamk_f32 v{an}, v{pf}, {fl(float(16*ks+t))}, v{base}')
                trig(Are + 8 * T2 + 4 * ks + t, Aim + 8 * T2 + 4 * ks + t)
    a(f'v_mul_f32 v{pf}, {fl(-1/2048)}, v26')
    a(f'v_mul_f32 v{base}, v{pf}, v28')
    for T in range(2):
        for t in range(4):
            a(f'v_fmamk_f32 v{an}, v{pf}, {fl(float(16*T+t))}, v{base}')
            a(f'v_cos_f32 v{TW1r+4*T+t}, v{an}')
            a(f'v_sin_f32 v{TW1i+4*T+t}, v{an}')
    a(f'v_cvt_f32_u32 v29, s30')
    a(f'v_add_f32 v29, v29, v28')
    for T in range(2):
        a(f'v_cvt_f32_u32 v30, v10')
        if T: a(f'v_add_f32 v30, {fl(16.0)}, v30')
        a(f'v_mul_f32 v{pf}, {fl(-1/2048)}, v30')
        a(f'v_mul_f32 v{base}, v{pf}, v29')
        for t in range(4):
            if t == 0: a(f'v_mov_b32 v{an}, v{base}')
            else: a(f'v_fmamk_f32 v{an}, v{pf}, {fl(float(t))}, v{base}')
            a(f'v_cos_f32 v{TW2r+4*T+t}, v{an}')
            a(f'v_sin_f32 v{TW2i+4*T+t}, v{an}')
    a(f'''
    v_and_b32 v4, 1, v11
    v_lshlrev_b32 v5, 2, v10
    v_lshl_add_u32 v5, v11, 9, v5
    v_lshl_add_u32 v6, v4, 6, v5          ; T=0
    v_xor_b32 v4, 1, v4
    v_lshl_add_u32 v7, v4, 6, v5          ; T=1
    s_waitcnt vmcnt(2)
    s_barrier
    ''')
    FA = 128
    for T in range(2):
        for ks in range(4):
            if ks: a(f'v_add_u32 v{6+T}, 2048, v{6+T}')
            r = FA + 16 * T + 4 * ks
            a(f'ds_read2_b32 {vr(r,2)}, v{6+T} offset0:0 offset1:32')
            a(f'ds_read2_b32 {vr(r+2,2)}, v{6+T} offset0:64 offset1:96')
    accR = [20, 160]; accI = [24, 164]
    def mf(d, A, B, first):
        a(f'v_mfma_f32_16x16x32_bf16 {vr(d,4)}, {vr(A,4)}, {vr(B,4)}, {"0" if first else vr(d,4)}')
    for T in range(2):
        for ks in range(4):
            n_out = 16 - 2 * (4 * T + ks + 1)
            a(f's_waitcnt lgkmcnt({min(n_out,15)})')
            mf(accR[T], FA + 16 * T + 4 * ks, Bre + 4 * ks, ks == 0)
            mf(accI[T], FA + 16 * T + 4 * ks, Bim + 4 * ks, ks == 0)
    t0, t1 = 128, 130
    def ctw(R, I, wr, wi):
        for p in range(2):
            a(f'v_pk_mul_f32 {pair(t0)}, {pair(I+2*p)}, {pair(wi+2*p)}')
            a(f'v_pk_mul_f32 {pair(t1)}, {pair(R+2*p)}, {pair(wi+2*p)}')
            a(f'v_pk_fma_f32 {pair(R+2*p)}, {pair(R+2*p)}, {pair(wr+2*p)}, {pair(t0)} neg_lo:[0,0,1] neg_hi:[0,0,1]')
            a(f'v_pk_fma_f32 {pair(I+2*p)}, {pair(I+2*p)}, {pair(wr+2*p)}, {pair(t1)}')
    FB = 136
    for T in range(2):
        ctw(accR[T], accI[T], TW1r + 4 * T, TW1i + 4 * T)
        for t in range(4):
            a(f'v_cvt_pk_bf16_f32 v{FB+4*T+t}, v{accR[T]+t}, v{accI[T]+t}')
    for T2 in range(2):
        for T in range(2):
            mf(accR[T2], Are + 8 * T2 + 4 * T, FB + 4 * T, T == 0)
            mf(accI[T2], Aim + 8 * T2 + 4 * T, FB + 4 * T, T == 0)
    a('s_waitcnt vmcnt(0)')
    wr, wi = 144, 148
    for T2 in range(2):
        for t in range(4):
            a(f'v_lshlrev_b32 v{wr+t}, 16, v{Wv+4*T2+t}')
            a(f'v_and_b32 v{wi+t}, 0xffff0000, v{Wv+4*T2+t}')
        ctw(accR[T2], accI[T2], wr, wi)
        for t in range(4):
            a(f'v_cvt_pk_bf16_f32 v{FB+4*T2+t}, v{accR[T2]+t}, -v{accI[T2]+t}')
    for T3 in range(2):
        for T2 in range(2):
            mf(accR[T3], FB + 4 * T2, Are + 8 * T3 + 4 * T2, T2 == 0)
            mf(accI[T3], FB + 4 * T2, Aim + 8 * T3 + 4 * T2, T2 == 0)
    EB = 8192
    a(f'''
    v_mul_u32_u24 v4, 288, v10
    s_lshl_b32 s30, s3, 6
    s_add_u32 s30, s30, {EB}
    v_lshl_add_u32 v5, v11, 4, v4
    v_add_u32 v6, s30, v5
    v_add_u32 v7, {EB}, v5
    ''')
    for T3 in range(2):
        ctw(accR[T3], accI[T3], TW2r + 4 * T3, TW2i + 4 * T3)
        for t in range(4):
            a(f'v_cvt_pk_bf16_f32 v{FB+4*T3+t}, v{accR[T3]+t}, v{accI[T3]+t}')
        a(f'ds_write_b128 v6, {vr(FB+4*T3,4)} offset:{16*288*T3}')
    a('s_waitcnt lgkmcnt(0)')
    a('s_barrier')
    for T4 in range(2):
        for ks in range(4):
            a(f'ds_read_b128 {vr(FA+16*T4+4*ks,4)}, v7 offset:{16*288*T4+64*ks}')
    for T4 in range(2):
        for ks in range(4):
            a(f's_waitcnt lgkmcnt({7-4*T4-ks})')
            mf(accR[T4], FA + 16 * T4 + 4 * ks, Bre + 4 * ks, ks == 0)
            mf(accI[T4], FA + 16 * T4 + 4 * ks, Bim + 4 * ks, ks == 0)
    a(f'''
    v_lshlrev_b32 v4, 7, v10
    v_lshl_add_u32 v4, v11, 4, v4
    s_lshl_b32 s30, s3, 11
    s_add_u32 s30, s30, s28
    s_add_u32 s30, s30, {WS_Z}
    v_add_u32 v4, s30, v4
    ''')
    for T4 in range(2):
        for t in range(4):
            a(f'v_cvt_pk_bf16_f32 v{12+4*T4+t}, v{accR[T4]+t}, -v{accI[T4]+t}')
        a(f'global_store_dwordx4 v4, {vr(12+4*T4,4)}, s[24:25] offset:{64*T4}')
    a('s_endpgm')
```

```python
from common import *
VRS = 160
VB = 0
AB = 10240
OB = AB + 7168 + 1024
LDS = OB + 8 * 912
VGPR = 96

def gen_k3(name):
    a = Asm()
    vTID, vVR, vC, vQ = 88, 89, 90, 91
    a(f'''
    s_cmp_ge_u32 s2, 256
    s_cbranch_scc1 {name}_end
    s_load_dwordx2 s[24:25], s[0:1], {KA['ws']}
    s_load_dwordx2 s[8:9], s[0:1], {KA['out']}
    v_lshrrev_b32 v1, 6, v0
    v_mov_b32 v{vTID}, v0
    v_and_b32 v0, 63, v0
    v_readfirstlane_b32 s3, v1        ; w
    s_and_b32 s4, s2, 7
    s_lshl_b32 s4, s4, 5
    s_lshr_b32 s5, s2, 3
    s_add_u32 s4, s4, s5              ; b : rows 8b..8b+7
    v_and_b32 v2, 7, v0               ; row
    v_lshrrev_b32 v3, 3, v0
    s_lshl_b32 s5, s3, 3
    v_add_u32 v3, s5, v3              ; kappa
    v_lshlrev_b32 v4, 13, v3
    v_lshl_add_u32 v4, v2, 2, v4
    s_lshl_b32 s6, s4, 5
    v_add_u32 v4, s6, v4
    v_cmp_lt_u32 vcc, 28, v3
    v_mov_b32 v5, 0x7ff00000
    v_cndmask_b32 v4, v4, v5, vcc
    s_waitcnt lgkmcnt(0)
    s_add_u32 s10, s24, {WS_Z}
    s_addc_u32 s11, s25, 0
    ''')
    srd(a, 12, 10, 256 * 8192)
    srd(a, 16, 24, WS_END)
    Zr = 8
    for m in range(8):
        a(f's_mov_b32 s7, {m << 18}')
        a(f'buffer_load_dword v{Zr+m}, v4, s[12:15], s7 offen')
    a(f'''
    v_lshlrev_b32 v5, 12, v0
    s_lshl_b32 s26, s4, 4
    s_add_u32 s26, s26, {WS_AT}
    s_lshl_b32 s27, s3, 18
    s_add_u32 s27, s27, s26
    s_lshl_b32 s28, s3, 10
    s_add_u32 m0, s28, {AB}
    s_add_u32 s29, s27, {4 << 18}
    buffer_load_dwordx4 v5, s[16:19], s27 offen lds
    s_cmp_eq_u32 s3, 3
    s_cbranch_scc1 {name}_noa2
    s_add_u32 m0, s28, {AB + 4096}
    s_nop 0
    buffer_load_dwordx4 v5, s[16:19], s29 offen lds
    ''')
    a.label(f'{name}_noa2')
    a(f'''
    s_lshl_b32 s26, s4, 5
    s_add_u32 s26, s26, {WS_GT}
    v_lshl_add_u32 v6, v2, 2, s26
    global_load_dword v7, v6, s[24:25]
    ''')
    WR, WI = 16, 24
    pairs = [(0, 4), (2, 6), (1, 5), (3, 7)]
    pos = {}
    for p, (x, y) in enumerate(pairs): pos[x] = 2 * p; pos[y] = 2 * p + 1
    a(f'''
    v_cvt_f32_u32 v32, v3
    v_mul_f32 v32, {fl(1/448)}, v32
    v_mov_b32 v{WR+pos[0]}, 1.0
    v_mov_b32 v{WI+pos[0]}, 0
    ''')
    for d0 in range(1, 8):
        a(f'v_mul_f32 v33, {fl(float(d0))}, v32')
        a(f'v_cos_f32 v{WR+pos[d0]}, v33')
        a(f'v_sin_f32 v{WI+pos[d0]}, v33')
    GF = 64
    a(f'''
    v_and_b32 v{vC}, 15, v0
    v_lshrrev_b32 v{vQ}, 4, v0
    v_and_b32 v36, 3, v{vC}
    v_lshlrev_b32 v36, 2, v36
    v_lshrrev_b32 v37, 2, v{vC}
    v_add_u32 v36, v36, v37
    s_lshl_b32 s26, s3, 4
    v_add_u32 v36, s26, v36           ; d1
    v_cvt_f32_u32 v37, v36
    v_mul_f32 v37, {fl(1/56)}, v37
    v_lshlrev_b32 v38, 2, v{vQ}       ; 4q
    v_cvt_f32_u32 v39, v38
    v_mul_f32 v40, v37, v39           ; base
    v_cmp_gt_u32 vcc, 56, v36
    v_mov_b32 v41, {fl(2.0/(S*D))}
    v_cndmask_b32 v41, 0, v41, vcc
    v_mul_f32 v45, 0.5, v41
    v_cmp_eq_u32 vcc, 0, v{vQ}
    v_cndmask_b32 v46, v41, v45, vcc
    v_cmp_eq_u32 vcc, 3, v{vQ}
    v_cndmask_b32 v47, v41, v45, vcc
    v_mov_b32 v45, 0
    v_cndmask_b32 v45, v41, v45, vcc
    ''')
    for ks in range(2):
        for t in range(4):
            wreg = 41
            if ks == 0 and t == 0: wreg = 46
            if ks == 1: wreg = 47 if t == 0 else 45
            a(f'v_fmamk_f32 v42, v37, {fl(float(16*ks+t))}, v40')
            a(f'v_cos_f32 v43, v42')
            a(f'v_sin_f32 v44, v42')
            a(f'v_mul_f32 v43, v{wreg}, v43')
            a(f'v_mul_f32 v44, v{wreg}, v44')
            a(f'v_cvt_pk_bf16_f32 v{GF+4*ks+t}, v43, -v44')
    a(f'''
    v_mul_u32_u24 v4, {VRS}, v2
    v_lshl_add_u32 v4, v3, 2, v4
    v_lshrrev_b32 v5, 3, v{vC}        ; hi
    v_mul_u32_u24 v46, {32*VRS}, v5
    v_mul_u32_u24 v47, {VRS}, v2
    v_add_u32 v46, v46, v47
    v_lshl_add_u32 v{vVR}, v{vQ}, 4, v46
    s_waitcnt vmcnt(0)
    ''')
    zr = [72, 74, 76, 78]; zi = [80, 82, 84, 86]
    for m in range(8):
        a(f'v_lshlrev_b32 v{zr[m>>1]+(m&1)}, 16, v{Zr+m}')
        a(f'v_and_b32 v{zi[m>>1]+(m&1)}, 0xffff0000, v{Zr+m}')
    res = radix8(a, zr, zi, 48, None, inverse=True)
    t0, t1 = 32, 34
    for p, (x, y) in enumerate(pairs):
        R, I = res[x]
        assert res[y] == (R + 1, I + 1)
        wr, wi = WR + 2 * p, WI + 2 * p
        a(f'v_pk_mul_f32 {pair(t0)}, {pair(I)}, {pair(wi)}')
        a(f'v_pk_mul_f32 {pair(t1)}, {pair(R)}, {pair(wi)}')
        a(f'v_pk_fma_f32 {pair(R)}, {pair(R)}, {pair(wr)}, {pair(t0)} neg_lo:[0,0,1] neg_hi:[0,0,1]')
        a(f'v_pk_fma_f32 {pair(I)}, {pair(I)}, {pair(wr)}, {pair(t1)}')
    for d0 in range(8):
        a(f'v_cvt_pk_bf16_f32 v{8+d0}, v{res[d0][0]}, v{res[d0][1]}')
        a(f'ds_write_b32 v4, v{8+d0} offset:{VB + 8*VRS*d0}')
    a(f'''
    v_bfe_u32 v16, v0, 2, 2           ; r'
    v_and_b32 v17, 3, v0              ; c'
    v_lshrrev_b32 v18, 1, v17
    v_and_b32 v17, 1, v17
    v_lshlrev_b32 v16, 4, v16
    v_lshl_add_u32 v16, v18, 6, v16
    v_lshl_add_u32 v16, v17, 3, v16
    v_lshl_add_u32 v16, v{vQ}, 7, v16
    s_lshl_b32 s26, s3, 11
    s_add_u32 s26, s26, {AB}
    v_add_u32 v16, s26, v16
    v_mul_u32_u24 v17, 912, v2
    v_lshl_add_u32 v17, v{vQ}, 4, v17
    v_lshl_add_u32 v17, v5, 3, v17
    s_lshl_b32 s26, s3, 8
    s_add_u32 s26, s26, {OB}
    v_add_u32 v17, s26, v17
    v_sub_f32 v18, 1.0, v7
    v_cvt_pk_bf16_f32 v18, v18, v18
    v_lshlrev_b32 v18, 16, v18        ; 1-g (bf16)
    s_waitcnt lgkmcnt(0)
    s_barrier
    ''')
    VF = [48, 52, 56, 60, 72, 76, 80, 84]
    acc = [32, 36, 40, 44]
    for i in range(4):
        for ks in range(2):
            a(f'ds_read_b128 {vr(VF[2*i+ks],4)}, v{vVR} offset:{VB + 8*VRS*i + 64*ks}')
    for t in range(4):
        a(f'ds_read_b64_tr_b16 {vr(8+2*t,2)}, v16 offset:{512*t}')
    for i in range(4):
        for ks in range(2):
            n = 12 - (2 * i + ks + 1)
            a(f's_waitcnt lgkmcnt({n})')
            c = '0' if ks == 0 else vr(acc[i], 4)
            a(f'v_mfma_f32_16x16x32_bf16 {vr(acc[i],4)}, {vr(GF+4*ks,4)}, {vr(VF[2*i+ks],4)}, {c}')
    a('s_waitcnt lgkmcnt(0)')
    for t in range(4):
        if t == 2:
            a('s_cmp_eq_u32 s3, 3')
            a(f's_cbranch_scc1 {name}_epi_done')
        d0, d1 = 8 + 2 * t, 9 + 2 * t
        a(f'v_lshlrev_b32 v20, 16, v{d0}')
        a(f'v_and_b32 v21, 0xffff0000, v{d0}')
        a(f'v_lshlrev_b32 v22, 16, v{d1}')
        a(f'v_and_b32 v23, 0xffff0000, v{d1}')
        for i in range(4):
            a(f'v_mul_f32 v{24+i}, v18, v{acc[i]+t}')
        for i in range(4):
            a(f'v_fmac_f32 v{24+i}, v7, v{20+i}')
        a(f'v_cvt_pk_bf16_f32 v{28+2*(t&1)}, v24, v25')
        a(f'v_cvt_pk_bf16_f32 v{29+2*(t&1)}, v26, v27')
        a(f'ds_write_b64 v17, {vr(28+2*(t&1),2)} offset:{64*t}')
    a.label(f'{name}_epi_done')
    a(f'''
    v_add_u32 v2, 256, v{vTID}
    s_mov_b32 s26, {(2**32 + 55)//56}
    v_mul_hi_u32 v3, v{vTID}, s26
    v_mul_hi_u32 v4, v2, s26
    v_mul_u32_u24 v5, {912 - 896}, v3
    v_lshl_add_u32 v5, v{vTID}, 4, v5
    v_add_u32 v5, {OB}, v5
    v_mul_u32_u24 v6, {912 - 896}, v4
    v_lshl_add_u32 v6, v2, 4, v6
    v_add_u32 v6, {OB}, v6
    s_mul_i32 s26, s4, 7168
    v_lshl_add_u32 v7, v{vTID}, 4, s26
    s_waitcnt lgkmcnt(0)
    s_barrier
    ds_read_b128 v[8:11], v5
    v_cmp_gt_u32 vcc, 192, v{vTID}
    s_and_saveexec_b64 s[28:29], vcc
    s_cbranch_execz {name}_one
    ds_read_b128 v[12:15], v6
    v_add_u32 v6, 4096, v7
    s_waitcnt lgkmcnt(0)
    global_store_dwordx4 v6, v[12:15], s[8:9]
    ''')
    a.label(f'{name}_one')
    a(f'''
    s_mov_b64 exec, s[28:29]
    s_waitcnt lgkmcnt(0)
    global_store_dwordx4 v7, v[8:11], s[8:9]
    ''')
    a.label(f'{name}_end')
    a('s_endpgm')
    return a
```

```python
import sys
from common import *
import k1
NAME = 'gated_mix__ssm_conv_s4__spectral_gfnet__prompt'
def build(kernels):
    hdr = open('cdna_kernels/' + NAME + '.s.ref').read().split('; Override launch')[0]
    s = hdr
    for (nm, gen, grid, block, lds, vg) in kernels:
        s += f'; @launch kernel={nm} grid=({grid},1,1) block=({block},1,1) lds={lds}\n'
    s += '.amdgcn_target "amdgcn-amd-amdhsa--gfx950"\n.text\n'
    for (nm, gen, grid, block, lds, vg) in kernels:
        a = gen(nm)
        s += kernel_head(nm) + a.finish() + kernel_desc(nm, vg)
    return s
if __name__ == '__main__':
    ks = [('k1_kernel', k1.gen_k1, 256, 1024, k1.K1_LDS, 128)]
    try:
        import k2, k3
        ks.append(('k2_kernel', k2.gen_k2, k2.GRID, k2.BLOCK, k2.LDS, k2.VGPR))
        ks.append(('k3_kernel', k3.gen_k3, 256, 256, k3.LDS, k3.VGPR))
    except ImportError as e:
        print('partial build', e)
    out = sys.argv[1] if len(sys.argv) > 1 else 'cdna_kernels/' + NAME + '.s'
    open(out, 'w').write(build(ks))
    print('wrote', out)
```

```python
from asm import Asm, vr, sr, ar
import struct, math
def f2u(x): return struct.unpack('<I', struct.pack('<f', x))[0]
def fl(x): return '0x%08x' % f2u(x)
LOG2E = fl(math.log2(math.e))
KA = dict(u=0, A_re=8, A_im=16, B_re=24, B_im=32, C_re=40, C_im=48, log_dt=56, Dskip=64, B_x=72, w_r=80, w_i=88, gate_w=96, out=104, dbg=112, ws=120)
S, D = 2048, 448
XBYTES = S * D * 2
WS_X1 = 0
WS_WT = 0x200000
WS_XT0 = 0x400000
XT_STRIDE = 4112
WS_XT1 = 0x600000
WS_KX = 0x800000
WS_GT = 0xA00000
WS_Z = 0xB00000
WS_AT = 0xD00000
WS_FL = 0xF00000
WS_END = 0xF10000

def pair(r): return vr(r, 2)
def cmul(a, dst, x, y, tmp=None):
    t = dst if tmp is None else tmp
    a(f'v_pk_mul_f32 {pair(t)}, {pair(x)}, {pair(y)} op_sel:[0,0] op_sel_hi:[1,0]')
    a(f'v_pk_fma_f32 {pair(dst)}, {pair(x)}, {pair(y)}, {pair(t)} op_sel:[1,1,0] op_sel_hi:[0,1,1] neg_lo:[1,0,0]')

def add64(a, sdst, ssrc, off):
    a(f's_add_u32 s{sdst}, s{ssrc}, {off}')
    a(f's_addc_u32 s{sdst+1}, s{ssrc+1}, 0')

def srd(a, sd, sbase, nbytes):
    a(f's_mov_b32 s{sd}, s{sbase}')
    a(f's_and_b32 s{sd+1}, s{sbase+1}, 0xffff')
    a(f's_mov_b32 s{sd+2}, {nbytes}')
    a(f's_mov_b32 s{sd+3}, 0x00020000')

def kernel_desc(name, vgpr, sgpr=96):
    acc = (vgpr + 3) // 4 * 4
    return f""".section .rodata,"a"
.p2align 6
.amdhsa_kernel {name}
  .amdhsa_next_free_vgpr {vgpr}
  .amdhsa_next_free_sgpr {sgpr}
  .amdhsa_accum_offset {acc}
  .amdhsa_group_segment_fixed_size 0
  .amdhsa_kernarg_size 128
  .amdhsa_user_sgpr_count 2
  .amdhsa_user_sgpr_kernarg_segment_ptr 1
  .amdhsa_system_sgpr_workgroup_id_x 1
  .amdhsa_float_denorm_mode_32 3
.end_amdhsa_kernel
.text
"""
def kernel_head(name):
    return f""".globl {name}
.p2align 8
.type {name},@function
{name}:
"""

def radix8(a, zr, zi, tmp, out, inverse):
    R2 = fl(math.sqrt(0.5))
    ar01, ar23, ai01, ai23 = tmp, tmp + 2, tmp + 4, tmp + 6
    br01, bi01, pr23, pi23 = tmp + 8, tmp + 10, tmp + 12, tmp + 14
    pk = lambda op, d, x, y, m='': a(f'v_pk_{op}_f32 {pair(d)}, {pair(x)}, {pair(y)} {m}'.rstrip())
    NEG = 'neg_lo:[0,1] neg_hi:[0,1]'
    pk('add', ar01, zr[0], zr[2]); pk('add', ar23, zr[1], zr[3])
    pk('add', ai01, zi[0], zi[2]); pk('add', ai23, zi[1], zi[3])
    pk('add', br01, zr[0], zr[2], NEG); pk('add', bi01, zi[0], zi[2], NEG)
    z2r, z3r, z6r, z7r = zr[1], zr[1] + 1, zr[3], zr[3] + 1
    z2i, z3i, z6i, z7i = zi[1], zi[1] + 1, zi[3], zi[3] + 1
    b3r, b3i = zr[0], zr[0] + 1
    a(f'v_sub_f32 v{b3r}, v{z3r}, v{z7r}')
    a(f'v_sub_f32 v{b3i}, v{z3i}, v{z7i}')
    if not inverse:
        a(f'v_sub_f32 v{pr23}, v{z2i}, v{z6i}')
        a(f'v_sub_f32 v{pi23}, v{z6r}, v{z2r}')
    else:
        a(f'v_sub_f32 v{pr23}, v{z6i}, v{z2i}')
        a(f'v_sub_f32 v{pi23}, v{z2r}, v{z6r}')
    s0, s1 = zi[0], zi[0] + 1
    b1r, b1i = br01 + 1, bi01 + 1
    if not inverse:
        a(f'v_sub_f32 v{s0}, v{b3i}, v{b3r}')
        a(f'v_add_f32 v{s1}, v{b3r}, v{b3i}')
        a(f'v_mul_f32 v{pr23+1}, {R2}, v{s0}')
        a(f'v_mul_f32 v{pi23+1}, {fl(-math.sqrt(0.5))}, v{s1}')
        a(f'v_add_f32 v{s0}, v{b1r}, v{b1i}')
        a(f'v_sub_f32 v{s1}, v{b1i}, v{b1r}')
        a(f'v_mul_f32 v{b1r}, {R2}, v{s0}')
        a(f'v_mul_f32 v{b1i}, {R2}, v{s1}')
    else:
        a(f'v_add_f32 v{s0}, v{b3r}, v{b3i}')
        a(f'v_sub_f32 v{s1}, v{b3r}, v{b3i}')
        a(f'v_mul_f32 v{pr23+1}, {fl(-math.sqrt(0.5))}, v{s0}')
        a(f'v_mul_f32 v{pi23+1}, {R2}, v{s1}')
        a(f'v_sub_f32 v{s0}, v{b1r}, v{b1i}')
        a(f'v_add_f32 v{s1}, v{b1r}, v{b1i}')
        a(f'v_mul_f32 v{b1r}, {R2}, v{s0}')
        a(f'v_mul_f32 v{b1i}, {R2}, v{s1}')
    res = {}
    def dft4(Pr, Qr, Pi, Qi, regs, ms):
        Er, Or, Ei, Oi = regs
        pk('add', Er, Pr, Qr); pk('add', Or, Pr, Qr, NEG)
        pk('add', Ei, Pi, Qi); pk('add', Oi, Pi, Qi, NEG)
        pk('add', Pr, Er, Er, 'op_sel:[0,1] op_sel_hi:[0,1] neg_hi:[0,1]')
        pk('add', Pi, Ei, Ei, 'op_sel:[0,1] op_sel_hi:[0,1] neg_hi:[0,1]')
        if not inverse:
            pk('add', Qr, Or, Oi, 'op_sel:[0,1] op_sel_hi:[0,1] neg_hi:[0,1]')
            pk('add', Qi, Oi, Or, 'op_sel:[0,1] op_sel_hi:[0,1] neg_lo:[0,1]')
        else:
            pk('add', Qr, Or, Oi, 'op_sel:[0,1] op_sel_hi:[0,1] neg_lo:[0,1]')
            pk('add', Qi, Oi, Or, 'op_sel:[0,1] op_sel_hi:[0,1] neg_hi:[0,1]')
        res[ms[0]] = (Pr, Pi); res[ms[2]] = (Pr + 1, Pi + 1)
        res[ms[1]] = (Qr, Qi); res[ms[3]] = (Qr + 1, Qi + 1)
    free = [zr[0], zr[1], zr[2], zr[3]]
    dft4(ar01, ar23, ai01, ai23, [zr[1], zr[2], zr[3], zi[1]], (0, 2, 4, 6))
    dft4(br01, pr23, bi01, pi23, [zr[1], zr[2], zr[3], zi[1]], (1, 3, 5, 7))
    return res

import os
STAMPS = os.environ.get('STAMPS', '0') == '1'
WS_TS = 0x1000000
class Stamper:
    def __init__(self, a, kidx): self.a = a; self.k = kidx; self.n = 0
    def reset(self, n=0): self.n = n
    def __call__(self):
        if not STAMPS: return
        a = self.a
        a(f's_memrealtime s[{64+2*self.n}:{65+2*self.n}]')
        a('s_waitcnt lgkmcnt(0)')
        self.n += 1
    def val(self, sreg):
        if not STAMPS: return
        self.a(f's_mov_b32 s{64+2*self.n}, s{sreg}')
        self.n += 1
    def flush(self, wsreg=24):
        if not STAMPS: return
        a = self.a
        self()
        a('s_mov_b64 exec, -1')
        a('v_mov_b32 v1, 0')
        for i in range(self.n):
            a(f'v_writelane_b32 v1, s{64+2*i}, {i}')
        a(f's_lshl_b32 s62, s2, 4')
        a(f's_add_u32 s62, s62, s3')
        a(f's_lshl_b32 s62, s62, 6')
        a(f's_add_u32 s62, s62, {WS_TS + self.k * 512 * 16 * 64}')
        a('v_mbcnt_lo_u32_b32 v2, -1, 0')
        a('v_mbcnt_hi_u32_b32 v2, -1, v2')
        a('v_lshl_add_u32 v2, v2, 2, s62')
        a('s_mov_b64 exec, 0xffff')
        a(f'global_store_dword v2, v1, s[{wsreg}:{wsreg+1}]')
```

```python
from common import *

import os
PREFETCH = os.environ.get('PREFETCH', '0') == '1'
K1_KREG = 14416
K1_B1BASE = 8 * K1_KREG
K1_B1REG = 5 * 1056
K1_TBASE = K1_B1BASE + 4 * K1_B1REG
K1_TREG = 4608
K1_LDS = K1_TBASE + 4 * K1_TREG

def gen_k1(name):
    global ST
    a = Asm()
    ST = Stamper(a, 0)
    ST()
    a(f'''
    s_cmp_ge_u32 s2, 256
    s_cbranch_scc1 {name}_end
    v_lshrrev_b32 v1, 6, v0
    v_and_b32 v0, 63, v0
    v_readfirstlane_b32 s3, v1
    s_cmp_lt_u32 s3, 8
    s_cbranch_scc1 {name}_kgen
    s_cmp_lt_u32 s3, 12
    s_cbranch_scc1 {name}_b1
    s_branch {name}_t
    ''')
    kgen(a, name)
    b1(a, name)
    trole(a, name)
    a.label(f'{name}_end')
    a('s_endpgm')
    return a

def kgen(a, name):
    a.label(f'{name}_kgen')
    ST.reset(1)
    if PREFETCH:
        a(f'''
        s_cmp_lt_u32 s2, 224
        s_cbranch_scc1 {name}_kgen_go
        s_cmp_lg_u32 s3, 0
        s_cbranch_scc1 {name}_end
        s_getpc_b64 s[8:9]
        ''')
        a.label(f'{name}_pc')
        a(f'''
        s_add_u32 s8, s8, k1_kernel-{name}_pc
        s_addc_u32 s9, s9, -1
        v_lshlrev_b32 v1, 7, v0
        global_load_dword v2, v1, s[8:9]
        v_add_u32 v1, 8192, v1
        global_load_dword v3, v1, s[8:9]
        s_waitcnt vmcnt(0)
        s_endpgm
        ''')
        a.label(f'{name}_kgen_go')
    a(f'''
    s_cmp_ge_u32 s2, 224
    s_cbranch_scc1 {name}_end
    s_load_dwordx16 s[8:23], s[0:1], 8
    s_load_dwordx2 s[24:25], s[0:1], {KA['ws']}
    s_lshr_b32 s4, s3, 2
    s_lshl_b32 s5, s2, 1
    s_add_u32 s5, s5, s4            ; d
    s_and_b32 s6, s3, 3
    s_lshl_b32 s7, s5, 9
    s_lshl_b32 s26, s6, 7
    s_add_u32 s7, s7, s26
    v_lshl_add_u32 v1, v0, 1, s7
    s_lshl_b32 s28, s2, 2
    s_mul_i32 s29, s3, {K1_KREG}    ; KB
    s_waitcnt lgkmcnt(0)
    s_load_dword s27, s[20:21], s28
    global_load_ushort v2, v1, s[8:9]
    global_load_ushort v3, v1, s[10:11]
    global_load_ushort v4, v1, s[12:13]
    global_load_ushort v5, v1, s[14:15]
    global_load_ushort v6, v1, s[16:17]
    global_load_ushort v7, v1, s[18:19]
    ''')
    vW, vRA, vFB, vP = 60, 61, 62, 63
    a(f'''
    v_lshl_add_u32 v{vW}, v0, 2, s29
    v_and_b32 v8, 31, v0
    v_lshrrev_b32 v9, 5, v0
    v_min_u32 v10, 20, v8
    v_add_u32 v10, 32, v10
    v_mul_u32_u24 v10, 272, v10
    v_lshl_add_u32 v10, v9, 4, v10
    v_add_u32 v{vRA}, s29, v10
    v_mul_u32_u24 v10, 272, v8
    v_lshl_add_u32 v10, v9, 4, v10
    v_add_u32 v{vFB}, s29, v10
    v_lshl_add_u32 v{vP}, v0, 4, s29
    ''')
    vA0, vA8 = 64, 65
    a(f'''
    s_and_b32 s30, s3, 4
    s_mul_i32 s30, s30, {K1_KREG}
    s_add_u32 s31, s30, 4096                  ; KT
    s_lshl_b32 s33, s6, 6
    v_add_u32 v11, s33, v0                    ; blk
    ''')
    def addr_of(dst, blk):
        a(f'''
        v_lshrrev_b32 v12, 5, v{blk}          ; hi
        v_mov_b32 v14, 16
        v_lshrrev_b32 v13, v12, v14           ; 16 >> hi
        v_sub_u32 v13, 16, v13                ; 16 - (16>>hi)
        v_add_u32 v14, 12, v12                ; 12 + hi
        v_cmp_gt_u32 vcc, 4, v12
        v_cndmask_b32 v13, v14, v13, vcc      ; rowbase
        v_and_b32 v14, 31, v{blk}
        v_mul_u32_u24 v14, 80, v14
        v_lshl_add_u32 v14, v13, 1, v14
        v_add_u32 v{dst}, s31, v14
        ''')
    addr_of(vA0, 11)
    a('v_add_u32 v15, 1, v11')
    addr_of(vA8, 15)
    a(f'''
    s_waitcnt lgkmcnt(0)
    s_lshl_b32 s34, s27, 16
    s_and_b32 s35, s27, 0xffff0000
    s_cmp_eq_u32 s4, 0
    s_cselect_b32 s34, s34, s35
    v_mov_b32 v8, s34
    v_mul_f32 v8, {LOG2E}, v8
    v_exp_f32 v8, v8
    v_cvt_pk_bf16_f32 v8, v8, v8
    v_lshlrev_b32 v8, 16, v8                  ; dt
    s_waitcnt vmcnt(0)
    ''')
    ST()
    for r in range(2, 8):
        a(f'v_lshlrev_b32 v{r}, 16, v{r}')
    va, vb = 10, 11
    dB, C, coef = 12, 14, 16
    E1, E8, W256 = 18, 20, 22
    a(f'''
    v_mul_f32 v{va}, v8, v2
    v_mul_f32 v{va}, {LOG2E}, v{va}
    v_mul_f32 v{vb}, v8, v3
    v_mul_f32 v{vb}, 0.15915494, v{vb}
    v_mul_f32 v{dB}, v8, v4
    v_mul_f32 v{dB+1}, v8, v5
    v_mov_b32 v{C}, v6
    v_mov_b32 v{C+1}, v7
    ''')
    cmul(a, coef, C, dB)
    def evalw(dst, e):
        if e == 1:
            a(f'v_exp_f32 v2, v{va}')
            a(f'v_fract_f32 v3, v{vb}')
        else:
            a(f'v_mul_f32 v2, {fl(float(e))}, v{va}')
            a(f'v_mul_f32 v3, {fl(float(e))}, v{vb}')
            a(f'v_exp_f32 v2, v2')
            a(f'v_fract_f32 v3, v3')
        a(f'v_cos_f32 v4, v3')
        a(f'v_sin_f32 v5, v3')
        a(f'v_mul_f32 v{dst}, v2, v4')
        a(f'v_mul_f32 v{dst+1}, v2, v5')
    evalw(E8, 8)
    evalw(E1, 1)
    evalw(W256, 256)
    fa, fb, tmp, E16 = 16, 24, 26, 28
    c0, c1 = 30, 31
    cmul(a, fb, fa, E8)
    cmul(a, E16, E8, E8)
    a('s_mov_b32 s36, 8')
    a.label(f'{name}_floop')
    a(f'v_cvt_pk_bf16_f32 v{c0}, v{fa}, v{fa+1}')
    a(f'v_cvt_pk_bf16_f32 v{c1}, v{fb}, v{fb+1}')
    cmul(a, fa, fa, E16, tmp)
    a(f'ds_write2_b32 v{vW}, v{c0}, v{c1} offset0:0 offset1:68')
    cmul(a, fb, fb, E16, tmp)
    a(f'v_cvt_pk_bf16_f32 v{c0+2}, v{fa}, v{fa+1}')
    a(f'v_cvt_pk_bf16_f32 v{c1+2}, v{fb}, v{fb+1}')
    cmul(a, fa, fa, E16, tmp)
    a(f'ds_write2_b32 v{vW}, v{c0+2}, v{c1+2} offset0:136 offset1:204')
    cmul(a, fb, fb, E16, tmp)
    a(f'v_add_u32 v{vW}, 1088, v{vW}')
    a('s_sub_u32 s36, s36, 1')
    a('s_cmp_lg_u32 s36, 0')
    a(f's_cbranch_scc1 {name}_floop')
    ST()
    r2, r3, r4, r6, t0, w512, w768, w1024 = 34, 36, 38, 40, 42, 44, 46, 48
    def cv(dst, src): a(f'v_cvt_pk_bf16_f32 v{dst}, v{src}, -v{src+1}')
    def wr2(x, y, o): a(f'ds_write2_b32 v{vW}, v{x}, v{y} offset0:{o} offset1:{o+68}')
    def nxt(): a(f'v_add_u32 v{vW}, 1088, v{vW}')
    q0, q1 = 30, 31
    a(f'v_mov_b32 v{q0}, 0x3f80')
    cv(q1, E1); wr2(q0, q1, 0)
    cmul(a, r2, E1, E1); cmul(a, r3, r2, E1)
    cv(q0 + 2, r2); cv(q1 + 2, r3); wr2(q0 + 2, q1 + 2, 136); nxt()
    cmul(a, r4, r2, r2); cmul(a, t0, r4, E1)
    cv(q0, r4); cv(q1, t0); wr2(q0, q1, 0)
    cmul(a, r6, r4, r2); cmul(a, t0, r4, r3)
    cv(q0 + 2, r6); cv(q1 + 2, t0); wr2(q0 + 2, q1 + 2, 136); nxt()
    cmul(a, t0, W256, r2)
    cv(q0, W256); cv(q1, t0); wr2(q0, q1, 0)
    cmul(a, t0, W256, r4); cmul(a, r3, W256, r6)
    cv(q0 + 2, t0); cv(q1 + 2, r3); wr2(q0 + 2, q1 + 2, 136); nxt()
    cmul(a, w512, W256, W256); cmul(a, t0, w512, r4)
    cv(q0, w512); cv(q1, t0); wr2(q0, q1, 0)
    cmul(a, w768, w512, W256); cmul(a, t0, w768, r4)
    cv(q0 + 2, w768); cv(q1 + 2, t0); wr2(q0 + 2, q1 + 2, 136); nxt()
    cmul(a, w1024, w512, w512); cmul(a, t0, w1024, W256)
    cv(q0, w1024); cv(q1, t0); wr2(q0, q1, 0)
    cmul(a, t0, w1024, w512); cmul(a, r3, w1024, w768)
    cv(q0 + 2, t0); cv(q1 + 2, r3); wr2(q0 + 2, q1 + 2, 136); nxt()
    cmul(a, t0, w1024, w1024)
    cv(q0, t0)
    a(f'ds_write_b32 v{vW}, v{q0}')
    ST()
    acc, FA, FB = 68, 84, 100
    for half in range(2):
        for k in range(4):
            ks = 4 * half + k
            a(f'ds_read_b128 {vr(FA+4*k,4)}, v{vRA} offset:{32*ks}')
            a(f'ds_read_b128 {vr(FB+4*k,4)}, v{vFB} offset:{32*ks}')
        for k in range(4):
            a(f's_waitcnt lgkmcnt({6-2*k})')
            c = '0' if (half == 0 and k == 0) else vr(acc, 16)
            a(f'v_mfma_f32_32x32x16_bf16 {vr(acc,16)}, {vr(FA+4*k,4)}, {vr(FB+4*k,4)}, {c}')
    for g in range(3):
        a(f'ds_write_b128 v{vP}, {vr(acc+4*g,4)} offset:{1024*g}')
    a('s_waitcnt lgkmcnt(0)')
    ST()
    a('s_barrier')
    ST()
    a(f'''
    s_cmp_eq_u32 s6, 3
    s_cbranch_scc1 {name}_kred_done
    s_lshl_b32 s33, s6, 10
    s_add_u32 s33, s33, s30
    v_lshl_add_u32 v2, v0, 4, s33
    ds_read_b128 v[4:7], v2
    ds_read_b128 v[8:11], v2 offset:{K1_KREG}
    ds_read_b128 v[12:15], v2 offset:{2*K1_KREG}
    ds_read_b128 v[16:19], v2 offset:{3*K1_KREG}
    v_and_b32 v20, 31, v0
    v_mul_u32_u24 v20, 80, v20
    v_lshrrev_b32 v21, 5, v0
    v_lshl_add_u32 v20, v21, 3, v20
    s_lshl_b32 s33, s6, 4
    s_add_u32 s33, s33, s31
    v_add_u32 v20, s33, v20
    s_waitcnt lgkmcnt(2)
    v_pk_add_f32 v[4:5], v[4:5], v[8:9]
    v_pk_add_f32 v[6:7], v[6:7], v[10:11]
    s_waitcnt lgkmcnt(0)
    v_pk_add_f32 v[12:13], v[12:13], v[16:17]
    v_pk_add_f32 v[14:15], v[14:15], v[18:19]
    v_pk_add_f32 v[4:5], v[4:5], v[12:13]
    v_pk_add_f32 v[6:7], v[6:7], v[14:15]
    v_cvt_pk_bf16_f32 v4, v4, v5
    v_cvt_pk_bf16_f32 v5, v6, v7
    ds_write_b64 v20, v[4:5]
    s_waitcnt lgkmcnt(0)
    ''')
    a.label(f'{name}_kred_done')
    a('s_barrier')
    a(f'''
    s_mov_b32 s40, 0x01000100
    s_mov_b32 s41, 0x03020302
    s_mov_b32 s42, 0x05040302
    s_mov_b32 s43, 0x05040100
    ds_read_u16 v9, v{vA8}
    s_cmp_eq_u32 s6, 0
    s_cbranch_scc1 {name}_kx0
    s_cmp_eq_u32 s6, 1
    s_cbranch_scc1 {name}_kx1
    ; ---- segment 3: (a,a),(a,a),(x,b),(b,b)
    ds_read_u16 v8, v{vA0}
    v_and_b32 v10, 1, v0
    v_cmp_eq_u32 vcc, 1, v10
    s_waitcnt lgkmcnt(0)
    v_perm_b32 v4, v8, v8, s40
    v_cndmask_b32 v10, v8, v9, vcc
    v_perm_b32 v7, v9, v9, s40
    v_mov_b32 v5, v4
    v_perm_b32 v6, v9, v10, s43
    s_branch {name}_kxs
    ''')
    a.label(f'{name}_kx1')
    a(f'''
    ; ---- segment 2: (a,a),(a,b),(b,b),(c,c)
    ds_read_b32 v8, v{vA0}
    s_waitcnt lgkmcnt(0)
    v_perm_b32 v4, v8, v8, s40
    v_mov_b32 v5, v8
    v_perm_b32 v6, v8, v8, s41
    v_perm_b32 v7, v9, v9, s40
    s_branch {name}_kxs
    ''')
    a.label(f'{name}_kx0')
    a(f'''
    ; ---- segments 0 / 1
    ds_read_b128 v[12:15], v{vA0}
    v_cmp_gt_u32 vcc, 32, v0
    s_waitcnt lgkmcnt(0)
    v_perm_b32 v4, v12, v12, s40      ; (v0,v0)
    v_perm_b32 v5, v13, v12, s42      ; (v2,v4)
    v_perm_b32 v6, v13, v13, s40      ; (v4,v4)
    v_perm_b32 v7, v9, v13, s42       ; (v6,v8)
    v_cndmask_b32 v4, v4, v12, vcc
    v_cndmask_b32 v5, v5, v13, vcc
    v_cndmask_b32 v6, v6, v14, vcc
    v_cndmask_b32 v7, v7, v15, vcc
    ''')
    a.label(f'{name}_kxs')
    a(f'''
    s_lshl_b32 s33, s5, 12
    s_lshl_b32 s34, s6, 10
    s_add_u32 s33, s33, s34
    s_add_u32 s33, s33, {WS_KX}
    v_lshl_add_u32 v2, v0, 4, s33
    global_store_dwordx4 v2, v[4:7], s[24:25]
    ''')
    ST.flush()
    a('s_endpgm')

def b1(a, name):
    a.label(f'{name}_b1')
    ST.reset(1)
    a(f'''
    s_load_dwordx2 s[8:9], s[0:1], {KA['u']}
    s_load_dwordx2 s[10:11], s[0:1], {KA['gate_w']}
    s_load_dwordx2 s[24:25], s[0:1], {KA['ws']}
    s_sub_u32 s4, s3, 8
    s_and_b32 s5, s4, 1
    s_lshl_b32 s6, s2, 1
    s_add_u32 s5, s5, s6              ; b
    s_lshr_b32 s6, s4, 1              ; kt
    s_mul_i32 s7, s4, {K1_B1REG}
    s_add_u32 s7, s7, {K1_B1BASE}     ; LB
    s_mul_i32 s26, s5, {4*896}
    v_lshl_add_u32 v1, v0, 4, s26
    v_lshlrev_b32 v2, 4, v0
    s_waitcnt lgkmcnt(0)
    ''')
    srd(a, 12, 8, XBYTES)
    srd(a, 16, 10, 896)
    for r in range(4):
        a(f's_add_u32 m0, s7, {1056*r}')
        a(f's_mov_b32 s27, {896*r}')
        a(f'buffer_load_dwordx4 v1, s[12:15], s27 offen lds')
    a(f's_add_u32 m0, s7, {1056*4}')
    a(f'buffer_load_dwordx4 v2, s[16:19], 0 offen lds')
    Cf, Sf, WR, WI = 4, 12, 20, 28
    kf, base, a0, a1, c0, c1 = 36, 37, 38, 39, 40, 41
    a(f'''
    v_and_b32 v3, 15, v0
    s_lshl_b32 s27, s6, 4
    v_add_u32 v3, s27, v3                 ; kappa
    v_cvt_f32_u32 v42, v3
    v_mul_f32 v{kf}, {fl(1/56)}, v42
    v_lshrrev_b32 v43, 4, v0              ; q
    v_cvt_f32_u32 v44, v43
    v_mul_f32 v44, {fl(8.0)}, v44
    v_mul_f32 v{base}, v{kf}, v44
    ''')
    for ks in range(2):
        for jj in range(4):
            k0 = 32 * ks + 2 * jj
            a(f'v_fmamk_f32 v{a0}, v{kf}, {fl(float(k0))}, v{base}')
            a(f'v_fmamk_f32 v{a1}, v{kf}, {fl(float(k0+1))}, v{base}')
            a(f'v_cos_f32 v{c0}, v{a0}')
            a(f'v_cos_f32 v{c1}, v{a1}')
            a(f'v_sin_f32 v{a0}, v{a0}')
            a(f'v_sin_f32 v{a1}, v{a1}')
            a(f'v_cvt_pk_bf16_f32 v{Cf+4*ks+jj}, v{c0}, v{c1}')
            a(f'v_cvt_pk_bf16_f32 v{Sf+4*ks+jj}, -v{a0}, -v{a1}')
    a('v_cmp_ne_u32 vcc, 3, v43')
    for jj in range(4):
        a(f'v_cndmask_b32 v{Cf+4+jj}, 0, v{Cf+4+jj}, vcc')
        a(f'v_cndmask_b32 v{Sf+4+jj}, 0, v{Sf+4+jj}, vcc')
    a(f'v_mul_f32 v{kf}, {fl(-1/448)}, v42')
    a(f'v_mov_b32 v{WR}, 1.0')
    a(f'v_mov_b32 v{WI}, 0')
    for d0 in range(1, 8):
        a(f'v_mul_f32 v{a0}, {fl(float(d0))}, v{kf}')
        a(f'v_cos_f32 v{WR+d0}, v{a0}')
        a(f'v_sin_f32 v{WI+d0}, v{a0}')
    vT, vG = 45, 46
    a(f'''
    v_and_b32 v47, 3, v0                  ; c'
    v_bfe_u32 v48, v0, 2, 2               ; r'
    v_lshlrev_b32 v49, 7, v43             ; 128 q
    v_lshl_add_u32 v49, v48, 4, v49       ; + 16 r'
    v_add_u32 v49, s7, v49
    v_mul_u32_u24 v50, 1056, v47
    v_add_u32 v{vT}, v49, v50
    v_and_b32 v50, 1, v47
    v_lshl_add_u32 v{vG}, v50, 3, v49
    ''')
    FA = 48
    GB = 64
    ST()
    a('s_waitcnt vmcnt(0)')
    ST()
    for tile in range(2):
        for ks in range(2):
            for rd in range(2):
                a(f'ds_read_b64_tr_b16 {vr(FA+8*tile+4*ks+2*rd,2)}, v{vT} offset:{512*ks+64*rd+8*tile}')
    for ks in range(2):
        for rd in range(2):
            a(f'ds_read_b64_tr_b16 {vr(GB+4*ks+2*rd,2)}, v{vG} offset:{4*1056+512*ks+64*rd}')
    aC, aS, aG = 72, 80, 88
    a('s_waitcnt lgkmcnt(4)')
    for tile in range(2):
        for ks in range(2):
            c = '0' if ks == 0 else vr(aC + 4 * tile, 4)
            a(f'v_mfma_f32_16x16x32_bf16 {vr(aC+4*tile,4)}, {vr(FA+8*tile+4*ks,4)}, {vr(Cf+4*ks,4)}, {c}')
            c = '0' if ks == 0 else vr(aS + 4 * tile, 4)
            a(f'v_mfma_f32_16x16x32_bf16 {vr(aS+4*tile,4)}, {vr(FA+8*tile+4*ks,4)}, {vr(Sf+4*ks,4)}, {c}')
    a('s_waitcnt lgkmcnt(0)')
    for tile in range(2):
        for ks in range(2):
            c = '0' if ks == 0 else vr(aG + 4 * tile, 4)
            a(f'v_mfma_f32_16x16x32_bf16 {vr(aG+4*tile,4)}, {vr(FA+8*tile+4*ks,4)}, {vr(GB+4*ks,4)}, {c}')
    t0, t1 = 96, 98
    zr = [aC, aC + 2, aC + 4, aC + 6]; zi = [aS, aS + 2, aS + 4, aS + 6]
    for p in range(4):
        a(f'v_pk_mul_f32 {pair(t0)}, {pair(zi[p])}, {pair(WI+2*p)}')
        a(f'v_pk_mul_f32 {pair(t1)}, {pair(zr[p])}, {pair(WI+2*p)}')
        a(f'v_pk_fma_f32 {pair(zr[p])}, {pair(zr[p])}, {pair(WR+2*p)}, {pair(t0)} neg_lo:[0,0,1] neg_hi:[0,0,1]')
        a(f'v_pk_fma_f32 {pair(zi[p])}, {pair(zi[p])}, {pair(WR+2*p)}, {pair(t1)}')
    res = radix8(a, zr, zi, 100, None, inverse=False)
    O = 48
    for m in range(8):
        a(f'v_cvt_pk_bf16_f32 v{O+m}, v{res[m][0]}, v{res[m][1]}')
    ST()
    a(f'''
    v_and_b32 v2, 15, v0
    v_lshlrev_b32 v2, 4, v2
    v_lshl_add_u32 v2, v43, 2, v2
    v_add_u32 v2, s7, v2
    ''')
    for m in range(8):
        a(f'ds_write_b32 v2, v{O+m} offset:{256*m}')
    a(f'''
    v_lshl_add_u32 v2, v0, 4, s7
    ds_read_b128 v[56:59], v2
    ds_read_b128 v[60:63], v2 offset:1024
    s_lshl_b32 s26, s5, 12
    s_lshl_b32 s27, s6, 11
    s_add_u32 s26, s26, s27
    s_add_u32 s26, s26, {WS_X1}
    v_lshl_add_u32 v3, v0, 4, s26
    s_waitcnt lgkmcnt(1)
    global_store_dwordx4 v3, v[56:59], s[24:25]
    s_waitcnt lgkmcnt(0)
    global_store_dwordx4 v3, v[60:63], s[24:25] offset:1024
    ''')
    if STAMPS:
        ST.flush(); a('s_mov_b64 exec, -1')
    a(f'''
    s_cmp_lg_u32 s6, 0
    s_cbranch_scc1 {name}_end
    ''')
    a(f'v_mov_b32 v2, v{aG}')
    for k in range(1, 8):
        a(f'v_add_f32_dpp v2, v{aG+k}, v2 row_shl:{k} row_mask:0xf bank_mask:0xf')
    a(f'''
    v_cvt_pk_bf16_f32 v2, v2, v2
    v_lshlrev_b32 v2, 16, v2
    v_mul_f32 v2, {fl(-math.log2(math.e))}, v2
    v_exp_f32 v2, v2
    v_add_f32 v2, 1.0, v2
    v_rcp_f32 v2, v2
    v_cvt_pk_bf16_f32 v2, v2, v2
    v_lshlrev_b32 v2, 16, v2
    s_lshl_b32 s26, s5, 4
    s_add_u32 s26, s26, {WS_GT}
    v_lshl_add_u32 v3, v43, 2, s26
    v_and_b32 v4, 15, v0
    v_cmp_eq_u32 vcc, 0, v4
    s_and_saveexec_b64 s[28:29], vcc
    global_store_dword v3, v2, s[24:25]
    s_endpgm
    ''')

def trole(a, name):
    a.label(f'{name}_t')
    ST.reset(1)
    a(f'''
    s_load_dwordx2 s[8:9], s[0:1], {KA['u']}
    s_load_dwordx4 s[16:19], s[0:1], {KA['w_r']}
    s_load_dwordx2 s[24:25], s[0:1], {KA['ws']}
    s_sub_u32 s4, s3, 12                 ; v
    s_mul_i32 s7, s4, {K1_TREG}
    s_add_u32 s7, s7, {K1_TBASE}         ; TB
    ; ---- W indices
    s_and_b32 s5, s2, 1                  ; half
    s_lshr_b32 s6, s2, 1                 ; pg
    s_lshr_b32 s26, s6, 5                ; w_
    s_bfe_u32 s27, s6, 0x20003           ; g_ = (pg>>3)&3
    s_and_b32 s28, s6, 7                 ; a_
    s_lshl_b32 s29, s28, 1
    s_lshl_b32 s30, s26, 4
    s_add_u32 s29, s29, s30
    s_lshl_b32 s30, s27, 8
    s_add_u32 s29, s29, s30              ; P0
    s_lshl_b32 s30, s5, 2
    s_add_u32 s30, s30, s4               ; m
    s_mul_i32 s31, s30, 56
    v_and_b32 v2, 31, v0                 ; kappa
    v_lshrrev_b32 v3, 5, v0              ; T
    v_lshlrev_b32 v4, 10, v3
    v_add_u32 v4, s29, v4                ; vp
    s_cmp_eq_u32 s5, 0
    s_cbranch_scc1 {name}_wdir
    v_sub_u32 v4, 2048, v4
    s_sub_u32 s31, 448, s31
    v_sub_u32 v5, s31, v2                ; kcol
    s_mov_b32 s33, -450
    s_mov_b32 s34, 0x80000000
    s_branch {name}_wcom
    ''')
    a.label(f'{name}_wdir')
    a(f'''
    v_add_u32 v5, s31, v2
    s_mov_b32 s33, 450
    s_mov_b32 s34, 0
    ''')
    a.label(f'{name}_wcom')
    a(f'''
    s_movk_i32 s35, 450
    v_lshlrev_b32 v5, 1, v5
    v_mad_u32_u24 v6, v4, s35, v5        ; offB
    v_and_b32 v4, 2047, v4
    v_mad_u32_u24 v7, v4, s35, v5
    s_waitcnt lgkmcnt(0)
    ''')
    WR_, WI_ = 8, 16
    for cc in range(2):
        for t in range(4):
            dl = cc + 64 * t
            i = 4 * cc + t
            if dl == 0:
                ad = 7
            else:
                a(f's_mul_i32 s36, s33, {dl}')
                a(f'v_add_u32 v24, s36, v6')
                ad = 24
            a(f'global_load_ushort v{WR_+i}, v{ad}, s[16:17]')
            a(f'global_load_ushort v{WI_+i}, v{ad}, s[18:19]')
    a(f'''
    s_cmp_ge_u32 s2, 224
    s_cbranch_scc1 {name}_w_only
    s_mul_hi_u32 s37, s2, 613566757      ; lt = i/7
    s_mul_i32 s38, s37, 7
    s_sub_u32 s38, s2, s38               ; dt
    ''')
    srd(a, 12, 8, XBYTES)
    a(f'''
    s_lshl_b32 s39, s38, 7
    s_lshl_b32 s40, s4, 5
    s_add_u32 s39, s39, s40              ; 128 dt + 32 v
    s_lshl_b32 s40, s37, 6               ; l0
    s_add_u32 s41, s40, 63
    v_lshrrev_b32 v25, 1, v0
    v_sub_u32 v25, s41, v25              ; l = l0+63-iota
    v_mul_u32_u24 v25, 896, v25
    v_and_b32 v26, 1, v0
    v_lshl_add_u32 v25, v26, 4, v25
    v_add_u32 v25, s39, v25
    s_mov_b32 m0, s7
    v_subrev_u32 v27, {32*896}, v25
    buffer_load_dwordx4 v25, s[12:15], 0 offen lds
    s_add_u32 m0, s7, 1024
    s_sub_u32 s41, s40, 1
    s_mul_i32 s41, s41, 896
    buffer_load_dwordx4 v27, s[12:15], 0 offen lds
    s_add_u32 s41, s41, s39
    s_cmp_eq_u32 s37, 0
    s_cselect_b32 s41, 0x70000000, s41
    v_lshl_add_u32 v27, v26, 4, s41
    s_add_u32 m0, s7, 2048
    s_mov_b64 exec, 3
    buffer_load_dwordx4 v27, s[12:15], 0 offen lds
    s_mov_b64 exec, -1
    v_lshrrev_b32 v28, 4, v0             ; G
    v_bfe_u32 v29, v0, 2, 2              ; r'
    v_lshl_add_u32 v29, v28, 3, v29
    v_lshlrev_b32 v29, 5, v29
    v_and_b32 v30, 3, v0
    v_lshl_add_u32 v29, v30, 3, v29
    v_add_u32 v29, s7, v29               ; vTR
    v_and_b32 v30, 15, v0
    v_mul_u32_u24 v30, 144, v30
    v_lshl_add_u32 v30, v28, 4, v30
    s_add_u32 s42, s7, 2080
    v_add_u32 v30, s42, v30              ; vSW
    v_lshrrev_b32 v31, 3, v0
    v_and_b32 v32, 7, v0
    v_mul_u32_u24 v33, 144, v31
    v_lshl_add_u32 v33, v32, 4, v33
    v_add_u32 v33, s42, v33              ; vSR
    s_lshr_b32 s43, s39, 1               ; 64dt+16v
    v_add_u32 v31, s43, v31
    v_mul_u32_u24 v31, {XT_STRIDE}, v31
    v_lshl_add_u32 v31, v32, 4, v31
    s_sub_u32 s44, 31, s37
    s_lshl_b32 s44, s44, 7
    v_add_u32 v31, s44, v31              ; vG
    ''')
    ST()
    a('s_waitcnt vmcnt(0)')
    ST()
    R = 36
    for ver in range(2):
        for h in range(2):
            for rd in range(2):
                a(f'ds_read_b64_tr_b16 {vr(R+8*ver+4*h+2*rd,2)}, v29 offset:{1024*h+128*rd+32*ver}')
    for ver in range(2):
        a(f's_waitcnt lgkmcnt({4 if ver == 0 else 0})')
        for h in range(2):
            a(f'ds_write_b128 v30, {vr(R+8*ver+4*h,4)} offset:{64*h}')
        for hh in range(2):
            a(f'ds_read_b128 {vr(R+16+4*hh,4)}, v33 offset:{8*144*hh}')
        off = WS_XT0 if ver == 0 else WS_XT1
        a(f's_add_u32 s46, s24, {off}')
        a(f's_addc_u32 s47, s25, 0')
        a(f'v_add_u32 v34, {8*XT_STRIDE}, v31')
        a('s_waitcnt lgkmcnt(1)')
        a(f'global_store_dwordx4 v31, {vr(R+16,4)}, s[46:47]')
        a('s_waitcnt lgkmcnt(0)')
        a(f'global_store_dwordx4 v34, {vr(R+20,4)}, s[46:47]')
    a(f'''
    s_cmp_lg_u32 s37, 0
    s_cbranch_scc1 {name}_wpack
    v_and_b32 v34, 15, v0
    v_add_u32 v34, s43, v34
    v_mul_u32_u24 v34, {XT_STRIDE}, v34
    v_bfe_u32 v35, v0, 4, 1
    v_mul_u32_u24 v35, {WS_XT1-WS_XT0}, v35
    v_add_u32 v34, v34, v35
    v_add_u32 v34, {WS_XT0+4096}, v34
    v_mov_b32 v60, 0
    v_mov_b32 v61, 0
    v_mov_b32 v62, 0
    v_mov_b32 v63, 0
    s_mov_b32 exec_hi, 0
    global_store_dwordx4 v34, v[60:63], s[24:25]
    s_mov_b64 exec, -1
    s_branch {name}_wpack
    ''')
    a.label(f'{name}_w_only')
    a('s_waitcnt vmcnt(0)')
    a.label(f'{name}_wpack')
    P = 64
    for i in range(8):
        a(f'v_lshl_or_b32 v{P+i}, v{WI_+i}, 16, v{WR_+i}')
        a(f'v_xor_b32 v{P+i}, s34, v{P+i}')
    a(f'''
    v_mul_u32_u24 v2, 80, v2
    v_lshl_add_u32 v2, v3, 5, v2
    v_add_u32 v2, s7, v2
    ds_write_b128 v2, v[{P}:{P+3}]
    ds_write_b128 v2, v[{P+4}:{P+7}] offset:16
    v_lshrrev_b32 v4, 2, v0
    v_and_b32 v5, 3, v0
    v_mul_u32_u24 v6, 80, v4
    v_lshl_add_u32 v6, v5, 4, v6
    v_add_u32 v6, s7, v6
    ds_read_b128 v[8:11], v6
    ds_read_b128 v[12:15], v6 offset:{16*80}
    s_lshl_b32 s36, s30, 18
    s_lshl_b32 s37, s26, 11
    s_add_u32 s36, s36, s37
    s_lshl_b32 s37, s27, 9
    s_add_u32 s36, s36, s37
    s_lshl_b32 s37, s28, 6
    s_add_u32 s36, s36, s37
    s_add_u32 s36, s36, {WS_WT}
    v_lshlrev_b32 v4, 13, v4
    v_lshl_add_u32 v4, v5, 4, v4
    v_add_u32 v4, s36, v4
    v_add_u32 v5, {16*8192}, v4
    s_waitcnt lgkmcnt(1)
    global_store_dwordx4 v4, v[8:11], s[24:25]
    s_waitcnt lgkmcnt(0)
    global_store_dwordx4 v5, v[12:15], s[24:25]
    ''')
    ST.reset(3)
    ST.flush()
    a('s_endpgm')
```

```python
from common import *
GRID = 224 + 232
BLOCK = 256
UC = 4160
DREG = 4 * UC + 4608
RB = 2 * DREG
LDS = RB + 4 * 4096
VGPR = 168

def gen_k2(name):
    global ST
    a = Asm()
    ST = Stamper(a, 1)
    ST()
    a(f'''
    s_cmp_ge_u32 s2, {GRID}
    s_cbranch_scc1 {name}_end
    v_lshrrev_b32 v1, 6, v0
    v_and_b32 v0, 63, v0
    v_readfirstlane_b32 s3, v1
    s_load_dwordx2 s[24:25], s[0:1], {KA['ws']}
    s_cmp_ge_u32 s2, 224
    s_cbranch_scc1 {name}_b2
    ''')
    conv(a, name)
    b2(a, name)
    a.label(f'{name}_end')
    a('s_endpgm')
    return a

def conv(a, name):
    a(f'''
    s_load_dwordx2 s[8:9], s[0:1], {KA['Dskip']}
    s_lshr_b32 s4, s3, 1              ; dl
    s_and_b32 s5, s3, 1               ; hf
    s_lshl_b32 s6, s2, 1
    s_add_u32 s6, s6, s4              ; d
    s_mul_i32 s7, s4, {DREG}          ; DB
    s_lshl_b32 s28, s2, 2
    v_lshlrev_b32 v1, 4, v0           ; 16*lane
    s_mul_i32 s26, s6, {XT_STRIDE}
    s_lshl_b32 s27, s5, 2
    s_add_u32 s26, s26, s27
    s_lshl_b32 s29, s5, 1
    s_mul_i32 s29, s29, {UC}
    s_add_u32 s29, s29, s7
    s_waitcnt lgkmcnt(0)
    s_load_dword s30, s[8:9], s28
    ''')
    srd(a, 12, 24, WS_END)
    for j in range(2):
        for k in range(4):
            a(f's_add_u32 s31, s26, {(WS_XT0 if j == 0 else WS_XT1) + 1024*k}')
            a(f's_add_u32 m0, s29, {UC*j + 1024*k}')
            a(f'buffer_load_dwordx4 v1, s[12:15], s31 offen lds')
    a(f'''
    s_lshl_b32 s26, s6, 12
    s_lshl_b32 s27, s5, 11
    s_add_u32 s26, s26, s27
    s_add_u32 s27, s27, s7
    ''')
    for k in range(2):
        a(f's_add_u32 s31, s26, {WS_KX + 1024*k}')
        a(f's_add_u32 m0, s27, {4*UC + 512 + 1024*k}')
        a(f'buffer_load_dwordx4 v1, s[12:15], s31 offen lds')
    a(f'''
    v_mov_b32 v4, 0
    v_mov_b32 v5, 0
    v_mov_b32 v6, 0
    v_mov_b32 v7, 0
    s_cmp_eq_u32 s5, 0
    s_cbranch_scc0 {name}_cz1
    s_add_u32 s31, s7, {4*UC}
    v_add_u32 v2, s31, v1
    s_mov_b32 exec_hi, 0
    ds_write_b128 v2, v[4:7]
    s_mov_b64 exec, -1
    s_branch {name}_cz2
    ''')
    a.label(f'{name}_cz1')
    a(f'''
    v_lshrrev_b32 v2, 1, v0
    v_mul_u32_u24 v2, {UC}, v2
    v_and_b32 v3, 1, v0
    v_lshl_add_u32 v2, v3, 4, v2
    s_add_u32 s31, s7, 4096
    v_add_u32 v2, s31, v2
    s_mov_b64 exec, 0xff
    ds_write_b128 v2, v[4:7]
    s_mov_b64 exec, -1
    ''')
    a.label(f'{name}_cz2')
    acc, UF, KF = 64, 96, 32
    vU, vK = 8, 9
    a(f'''
    v_and_b32 v10, 15, v0             ; c
    v_lshrrev_b32 v11, 4, v0          ; q
    v_lshrrev_b32 v12, 1, v11         ; q>>1
    v_and_b32 v13, 1, v11             ; q&1
    v_lshlrev_b32 v14, 4, v13
    v_lshlrev_b32 v15, 5, v12
    v_sub_u32 v14, v14, v15           ; 16(q&1) - 32(q>>1)
    v_and_b32 v15, 3, v10
    v_sub_u32 v15, 3, v15             ; sigma
    v_mul_u32_u24 v15, {UC}, v15
    v_lshrrev_b32 v16, 2, v10
    v_lshlrev_b32 v16, 3, v16
    v_sub_u32 v15, v15, v16
    v_add_u32 v15, v15, v14
    s_lshl_b32 s31, s5, 8             ; 64*rho0
    s_sub_u32 s33, s7, s31
    s_add_u32 s34, s33, {4088 - 3584}
    v_add_u32 v{vU}, s34, v15
    v_lshl_add_u32 v16, v10, 5, v14
    s_add_u32 s34, s33, {4*UC + 512}
    v_add_u32 v{vK}, s34, v16
    ''')
    for r in range(32):
        a(f'v_mov_b32 v{acc+r}, 0')
    ST.reset(1)
    ST()
    a('s_waitcnt vmcnt(0) lgkmcnt(0)')
    ST()
    a('s_barrier')
    ST()
    a('s_mov_b32 s35, 4')
    a.label(f'{name}_cloop')
    def ld(k):
        a(f'ds_read_b128 {vr(KF+4*k,4)}, v{vK} offset:{512*k}')
        a(f'ds_read_b64 {vr(UF+4*k,2)}, v{vU} offset:{512*(7-k)}')
        a(f'ds_read_b64 {vr(UF+4*k+2,2)}, v{vU} offset:{512*(7-k)+8}')
    def mm(nu, e):
        mt = nu + e
        a(f'v_mfma_f32_16x16x32_bf16 {vr(acc+4*mt,4)}, {vr(UF+4*nu,4)}, {vr(KF+4*e,4)}, {vr(acc+4*mt,4)}')
    for k in range(5): ld(k)
    for k in range(8):
        a(f's_waitcnt lgkmcnt({12 if k <= 3 else 3*(7-k)})')
        prs = []
        for o in range(k + 1):
            if k + o <= 7:
                prs.append((k, o))
                if o != k: prs.append((o, k))
        prs.sort(key=lambda p: (min(p), p[0]))
        for (nu, e) in prs: mm(nu, e)
        if k + 5 <= 7: ld(k + 5)
    a(f'''
    v_subrev_u32 v{vU}, 64, v{vU}
    v_subrev_u32 v{vK}, 64, v{vK}
    s_sub_u32 s35, s35, 1
    s_cmp_lg_u32 s35, 0
    s_cbranch_scc1 {name}_cloop
    ''')
    ST()
    a(f'''
    s_lshl_b32 s31, s3, 12
    s_add_u32 s31, s31, {RB}
    v_add_u32 v2, s31, v1
    s_xor_b32 s33, s3, 1
    s_lshl_b32 s33, s33, 12
    s_add_u32 s33, s33, {RB}
    v_add_u32 v3, s33, v1
    s_cmp_eq_u32 s5, 0
    s_cbranch_scc0 {name}_cx1
    ''')
    for k in range(4): a(f'ds_write_b128 v2, {vr(acc+16+4*k,4)} offset:{1024*k}')
    a(f's_branch {name}_cx2')
    a.label(f'{name}_cx1')
    for k in range(4): a(f'ds_write_b128 v2, {vr(acc+4*k,4)} offset:{1024*k}')
    a('s_waitcnt lgkmcnt(0)')
    for r in range(16): a(f'v_mov_b32 v{acc+r}, v{acc+16+r}')
    a.label(f'{name}_cx2')
    a(f'''
    v_lshlrev_b32 v16, 5, v10
    v_lshl_add_u32 v16, v11, 3, v16       ; 32c + 8g
    s_lshl_b32 s34, s5, 11                ; 2048*hf
    s_sub_u32 s36, s7, s34
    s_add_u32 s36, s36, {4088 - 1536}
    v_sub_u32 v17, s36, v16
    s_lshl_b32 s36, s6, 12
    s_add_u32 s36, s36, s34
    s_add_u32 s36, s36, {WS_AT}
    v_add_u32 v18, s36, v16
    s_waitcnt lgkmcnt(0)
    s_lshl_b32 s37, s30, 16
    s_and_b32 s38, s30, 0xffff0000
    s_cmp_eq_u32 s4, 0
    s_cselect_b32 s37, s37, s38           ; Dskip f32
    s_barrier
    ''')
    for k in range(4):
        a(f'ds_read_b128 {vr(32+4*k,4)}, v3 offset:{1024*k}')
        a(f'ds_read_b64 {vr(48+2*k,2)}, v17 offset:{512*(3-k)}')
    for k in range(4):
        a(f's_waitcnt lgkmcnt({6-2*k})')
        y = acc + 4 * k
        a(f'v_pk_add_f32 {pair(y)}, {pair(y)}, {pair(32+4*k)}')
        a(f'v_pk_add_f32 {pair(y+2)}, {pair(y+2)}, {pair(34+4*k)}')
        d0, d1 = 48 + 2 * k, 49 + 2 * k
        a(f'v_and_b32 v20, 0xffff0000, v{d1}')
        a(f'v_lshlrev_b32 v21, 16, v{d1}')
        a(f'v_and_b32 v22, 0xffff0000, v{d0}')
        a(f'v_lshlrev_b32 v23, 16, v{d0}')
        for t in range(4):
            a(f'v_fmac_f32 v{y+t}, s37, v{20+t}')
        a(f'v_cvt_pk_bf16_f32 v{24+2*k}, v{y}, v{y+1}')
        a(f'v_cvt_pk_bf16_f32 v{25+2*k}, v{y+2}, v{y+3}')
        a(f'global_store_dwordx2 v18, {vr(24+2*k,2)}, s[24:25] offset:{512*k}')
    ST.flush()
    a('s_endpgm')

def b2(a, name):
    a.label(f'{name}_b2')
    ST.reset(1)
    a(f'''
    s_sub_u32 s4, s2, 224
    s_and_b32 s5, s4, 7               ; m
    s_lshr_b32 s6, s4, 3              ; kappa
    s_lshl_b32 s7, s5, 5
    s_add_u32 s7, s7, s6              ; col
    s_lshr_b32 s26, s6, 4
    s_lshl_b32 s26, s26, 7
    s_lshl_b32 s27, s5, 4
    s_add_u32 s26, s26, s27
    s_and_b32 s27, s6, 15
    s_add_u32 s26, s26, s27
    s_lshl_b32 s26, s26, 4            ; pos*16
    v_lshrrev_b32 v2, 5, v0
    v_lshlrev_b32 v2, 2, v2
    v_xor_b32 v2, v2, v0
    v_lshlrev_b32 v2, 12, v2
    v_and_b32 v10, 15, v0             ; c
    v_lshrrev_b32 v11, 4, v0          ; q / g
    ; W address
    v_lshrrev_b32 v3, 1, v10
    v_lshlrev_b32 v3, 6, v3
    v_and_b32 v4, 1, v10
    v_lshl_add_u32 v3, v4, 4, v3
    v_lshl_add_u32 v3, v11, 9, v3
    s_lshl_b32 s28, s7, 13
    s_lshl_b32 s29, s3, 11
    s_add_u32 s29, s29, s28
    s_add_u32 s29, s29, {WS_WT}
    v_add_u32 v3, s29, v3
    s_waitcnt lgkmcnt(0)
    ''')
    srd(a, 12, 24, WS_END)
    for k in range(2):
        a(f's_lshl_b32 s30, s3, 1')
        a(f's_add_u32 s30, s30, {k}')
        a(f's_lshl_b32 m0, s30, 10')
        a(f's_lshl_b32 s31, s30, 18')
        a(f's_add_u32 s31, s31, s26')
        a(f's_add_u32 s31, s31, {WS_X1}')
        a(f'buffer_load_dwordx4 v2, s[12:15], s31 offen lds')
    Wv = 12
    a(f'global_load_dwordx4 {vr(Wv,4)}, v3, s[24:25]')
    a(f'global_load_dwordx4 {vr(Wv+4,4)}, v3, s[24:25] offset:32')
    Bre, Bim = 32, 48
    Are, Aim = 64, 80
    TW1r, TW1i, TW2r, TW2i = 96, 104, 112, 120
    pf, base, an, cs, sn = 20, 21, 22, 23, 24
    a(f'''
    s_lshl_b32 s30, s3, 4
    v_add_u32 v25, s30, v10           ; p1 = 16v+c
    v_cvt_f32_u32 v26, v25
    v_cvt_f32_u32 v27, v11            ; q
    v_mul_f32 v28, 4.0, v27           ; 4q
    v_mul_f32 v{pf}, {fl(1/64)}, v26
    v_mul_f32 v{base}, v{pf}, v28
    ''')
    def trig(dre, dim):
        a(f'v_cos_f32 v{cs}, v{an}')
        a(f'v_sin_f32 v{sn}, v{an}')
        a(f'v_cvt_pk_bf16_f32 v{dre}, v{cs}, v{sn}')
        a(f'v_cvt_pk_bf16_f32 v{dim}, -v{sn}, v{cs}')
    for ks in range(4):
        for t in range(4):
            a(f'v_fmamk_f32 v{an}, v{pf}, {fl(float(16*ks+t))}, v{base}')
            trig(Bre + 4 * ks + t, Bim + 4 * ks + t)
    for T2 in range(2):
        a(f'v_cvt_f32_u32 v29, v10')
        if T2: a(f'v_add_f32 v29, {fl(16.0)}, v29')
        a(f'v_mul_f32 v{pf}, {fl(1/32)}, v29')
        a(f'v_mul_f32 v{base}, v{pf}, v28')
        for ks in range(2):
            for t in range(4):
                a(f'v_fmamk_f32 v{an}, v{pf}, {fl(float(16*ks+t))}, v{base}')
                trig(Are + 8 * T2 + 4 * ks + t, Aim + 8 * T2 + 4 * ks + t)
    a(f'v_mul_f32 v{pf}, {fl(-1/2048)}, v26')
    a(f'v_mul_f32 v{base}, v{pf}, v28')
    for T in range(2):
        for t in range(4):
            a(f'v_fmamk_f32 v{an}, v{pf}, {fl(float(16*T+t))}, v{base}')
            a(f'v_cos_f32 v{TW1r+4*T+t}, v{an}')
            a(f'v_sin_f32 v{TW1i+4*T+t}, v{an}')
    a(f'v_cvt_f32_u32 v29, s30')
    a(f'v_add_f32 v29, v29, v28')
    for T in range(2):
        a(f'v_cvt_f32_u32 v30, v10')
        if T: a(f'v_add_f32 v30, {fl(16.0)}, v30')
        a(f'v_mul_f32 v{pf}, {fl(-1/2048)}, v30')
        a(f'v_mul_f32 v{base}, v{pf}, v29')
        for t in range(4):
            if t == 0: a(f'v_mov_b32 v{an}, v{base}')
            else: a(f'v_fmamk_f32 v{an}, v{pf}, {fl(float(t))}, v{base}')
            a(f'v_cos_f32 v{TW2r+4*T+t}, v{an}')
            a(f'v_sin_f32 v{TW2i+4*T+t}, v{an}')
    a(f'''
    v_and_b32 v4, 1, v11
    v_lshlrev_b32 v5, 2, v10
    v_lshl_add_u32 v5, v11, 9, v5
    v_lshl_add_u32 v6, v4, 6, v5          ; T=0
    v_xor_b32 v4, 1, v4
    v_lshl_add_u32 v7, v4, 6, v5          ; T=1
    ''')
    ST()
    a('s_waitcnt vmcnt(2)')
    ST()
    a('s_barrier')
    ST()
    FA = 128
    for T in range(2):
        for ks in range(4):
            if ks: a(f'v_add_u32 v{6+T}, 2048, v{6+T}')
            r = FA + 16 * T + 4 * ks
            a(f'ds_read2_b32 {vr(r,2)}, v{6+T} offset0:0 offset1:32')
            a(f'ds_read2_b32 {vr(r+2,2)}, v{6+T} offset0:64 offset1:96')
    accR = [20, 160]; accI = [24, 164]
    def mf(d, A, B, first):
        a(f'v_mfma_f32_16x16x32_bf16 {vr(d,4)}, {vr(A,4)}, {vr(B,4)}, {"0" if first else vr(d,4)}')
    for T in range(2):
        for ks in range(4):
            n_out = 16 - 2 * (4 * T + ks + 1)
            a(f's_waitcnt lgkmcnt({min(n_out,15)})')
            mf(accR[T], FA + 16 * T + 4 * ks, Bre + 4 * ks, ks == 0)
            mf(accI[T], FA + 16 * T + 4 * ks, Bim + 4 * ks, ks == 0)
    t0, t1 = 128, 130
    def ctw(R, I, wr, wi):
        for p in range(2):
            a(f'v_pk_mul_f32 {pair(t0)}, {pair(I+2*p)}, {pair(wi+2*p)}')
            a(f'v_pk_mul_f32 {pair(t1)}, {pair(R+2*p)}, {pair(wi+2*p)}')
            a(f'v_pk_fma_f32 {pair(R+2*p)}, {pair(R+2*p)}, {pair(wr+2*p)}, {pair(t0)} neg_lo:[0,0,1] neg_hi:[0,0,1]')
            a(f'v_pk_fma_f32 {pair(I+2*p)}, {pair(I+2*p)}, {pair(wr+2*p)}, {pair(t1)}')
    FB = 136
    for T in range(2):
        ctw(accR[T], accI[T], TW1r + 4 * T, TW1i + 4 * T)
        for t in range(4):
            a(f'v_cvt_pk_bf16_f32 v{FB+4*T+t}, v{accR[T]+t}, v{accI[T]+t}')
    for T2 in range(2):
        for T in range(2):
            mf(accR[T2], Are + 8 * T2 + 4 * T, FB + 4 * T, T == 0)
            mf(accI[T2], Aim + 8 * T2 + 4 * T, FB + 4 * T, T == 0)
    a('s_waitcnt vmcnt(0)')
    wr, wi = 144, 148
    for T2 in range(2):
        for t in range(4):
            a(f'v_lshlrev_b32 v{wr+t}, 16, v{Wv+4*T2+t}')
            a(f'v_and_b32 v{wi+t}, 0xffff0000, v{Wv+4*T2+t}')
        ctw(accR[T2], accI[T2], wr, wi)
        for t in range(4):
            a(f'v_cvt_pk_bf16_f32 v{FB+4*T2+t}, v{accR[T2]+t}, -v{accI[T2]+t}')
    for T3 in range(2):
        for T2 in range(2):
            mf(accR[T3], FB + 4 * T2, Are + 8 * T3 + 4 * T2, T2 == 0)
            mf(accI[T3], FB + 4 * T2, Aim + 8 * T3 + 4 * T2, T2 == 0)
    EB = 8192
    a(f'''
    v_mul_u32_u24 v4, 288, v10
    s_lshl_b32 s30, s3, 6
    s_add_u32 s30, s30, {EB}
    v_lshl_add_u32 v5, v11, 4, v4
    v_add_u32 v6, s30, v5
    v_add_u32 v7, {EB}, v5
    ''')
    for T3 in range(2):
        ctw(accR[T3], accI[T3], TW2r + 4 * T3, TW2i + 4 * T3)
        for t in range(4):
            a(f'v_cvt_pk_bf16_f32 v{FB+4*T3+t}, v{accR[T3]+t}, v{accI[T3]+t}')
        a(f'ds_write_b128 v6, {vr(FB+4*T3,4)} offset:{16*288*T3}')
    a('s_waitcnt lgkmcnt(0)')
    ST()
    a('s_barrier')
    ST()
    for T4 in range(2):
        for ks in range(4):
            a(f'ds_read_b128 {vr(FA+16*T4+4*ks,4)}, v7 offset:{16*288*T4+64*ks}')
    for T4 in range(2):
        for ks in range(4):
            a(f's_waitcnt lgkmcnt({7-4*T4-ks})')
            mf(accR[T4], FA + 16 * T4 + 4 * ks, Bre + 4 * ks, ks == 0)
            mf(accI[T4], FA + 16 * T4 + 4 * ks, Bim + 4 * ks, ks == 0)
    a(f'''
    v_lshlrev_b32 v4, 7, v10
    v_lshl_add_u32 v4, v11, 4, v4
    s_lshl_b32 s30, s3, 11
    s_add_u32 s30, s30, s28
    s_add_u32 s30, s30, {WS_Z}
    v_add_u32 v4, s30, v4
    ''')
    for T4 in range(2):
        for t in range(4):
            a(f'v_cvt_pk_bf16_f32 v{12+4*T4+t}, v{accR[T4]+t}, -v{accI[T4]+t}')
        a(f'global_store_dwordx4 v4, {vr(12+4*T4,4)}, s[24:25] offset:{64*T4}')
    ST.flush()
    a('s_endpgm')
```

```python
from common import *
VRS = 160
VB = 0
AB = 10240
OB = AB + 7168 + 1024
LDS = OB + 8 * 912
VGPR = 96

def gen_k3(name):
    a = Asm()
    ST = Stamper(a, 2)
    ST()
    vTID, vVR, vC, vQ = 88, 89, 90, 91
    a(f'''
    s_cmp_ge_u32 s2, 256
    s_cbranch_scc1 {name}_end
    s_load_dwordx2 s[24:25], s[0:1], {KA['ws']}
    s_load_dwordx2 s[8:9], s[0:1], {KA['out']}
    v_lshrrev_b32 v1, 6, v0
    v_mov_b32 v{vTID}, v0
    v_and_b32 v0, 63, v0
    v_readfirstlane_b32 s3, v1        ; w
    s_and_b32 s4, s2, 7
    s_lshl_b32 s4, s4, 5
    s_lshr_b32 s5, s2, 3
    s_add_u32 s4, s4, s5              ; b : rows 8b..8b+7
    v_and_b32 v2, 7, v0               ; row
    v_lshrrev_b32 v3, 3, v0
    s_lshl_b32 s5, s3, 3
    v_add_u32 v3, s5, v3              ; kappa
    v_lshlrev_b32 v4, 13, v3
    v_lshl_add_u32 v4, v2, 2, v4
    s_lshl_b32 s6, s4, 5
    v_add_u32 v4, s6, v4
    v_cmp_lt_u32 vcc, 28, v3
    v_mov_b32 v5, 0x7ff00000
    v_cndmask_b32 v4, v4, v5, vcc
    s_waitcnt lgkmcnt(0)
    s_add_u32 s10, s24, {WS_Z}
    s_addc_u32 s11, s25, 0
    ''')
    srd(a, 12, 10, 256 * 8192)
    srd(a, 16, 24, WS_END)
    Zr = 8
    for m in range(8):
        a(f's_mov_b32 s7, {m << 18}')
        a(f'buffer_load_dword v{Zr+m}, v4, s[12:15], s7 offen')
    a(f'''
    v_lshlrev_b32 v5, 12, v0
    s_lshl_b32 s26, s4, 4
    s_add_u32 s26, s26, {WS_AT}
    s_lshl_b32 s27, s3, 18
    s_add_u32 s27, s27, s26
    s_lshl_b32 s28, s3, 10
    s_add_u32 m0, s28, {AB}
    s_add_u32 s29, s27, {4 << 18}
    buffer_load_dwordx4 v5, s[16:19], s27 offen lds
    s_cmp_eq_u32 s3, 3
    s_cbranch_scc1 {name}_noa2
    s_add_u32 m0, s28, {AB + 4096}
    s_nop 0
    buffer_load_dwordx4 v5, s[16:19], s29 offen lds
    ''')
    a.label(f'{name}_noa2')
    a(f'''
    s_lshl_b32 s26, s4, 5
    s_add_u32 s26, s26, {WS_GT}
    v_lshl_add_u32 v6, v2, 2, s26
    global_load_dword v7, v6, s[24:25]
    ''')
    WR, WI = 16, 24
    pairs = [(0, 4), (2, 6), (1, 5), (3, 7)]
    pos = {}
    for p, (x, y) in enumerate(pairs): pos[x] = 2 * p; pos[y] = 2 * p + 1
    a(f'''
    v_cvt_f32_u32 v32, v3
    v_mul_f32 v32, {fl(1/448)}, v32
    v_mov_b32 v{WR+pos[0]}, 1.0
    v_mov_b32 v{WI+pos[0]}, 0
    ''')
    for d0 in range(1, 8):
        a(f'v_mul_f32 v33, {fl(float(d0))}, v32')
        a(f'v_cos_f32 v{WR+pos[d0]}, v33')
        a(f'v_sin_f32 v{WI+pos[d0]}, v33')
    GF = 64
    a(f'''
    v_and_b32 v{vC}, 15, v0
    v_lshrrev_b32 v{vQ}, 4, v0
    v_and_b32 v36, 3, v{vC}
    v_lshlrev_b32 v36, 2, v36
    v_lshrrev_b32 v37, 2, v{vC}
    v_add_u32 v36, v36, v37
    s_lshl_b32 s26, s3, 4
    v_add_u32 v36, s26, v36           ; d1
    v_cvt_f32_u32 v37, v36
    v_mul_f32 v37, {fl(1/56)}, v37
    v_lshlrev_b32 v38, 2, v{vQ}       ; 4q
    v_cvt_f32_u32 v39, v38
    v_mul_f32 v40, v37, v39           ; base
    v_cmp_gt_u32 vcc, 56, v36
    v_mov_b32 v41, {fl(2.0/(S*D))}
    v_cndmask_b32 v41, 0, v41, vcc
    v_mul_f32 v45, 0.5, v41
    v_cmp_eq_u32 vcc, 0, v{vQ}
    v_cndmask_b32 v46, v41, v45, vcc
    v_cmp_eq_u32 vcc, 3, v{vQ}
    v_cndmask_b32 v47, v41, v45, vcc
    v_mov_b32 v45, 0
    v_cndmask_b32 v45, v41, v45, vcc
    ''')
    for ks in range(2):
        for t in range(4):
            wreg = 41
            if ks == 0 and t == 0: wreg = 46
            if ks == 1: wreg = 47 if t == 0 else 45
            a(f'v_fmamk_f32 v42, v37, {fl(float(16*ks+t))}, v40')
            a(f'v_cos_f32 v43, v42')
            a(f'v_sin_f32 v44, v42')
            a(f'v_mul_f32 v43, v{wreg}, v43')
            a(f'v_mul_f32 v44, v{wreg}, v44')
            a(f'v_cvt_pk_bf16_f32 v{GF+4*ks+t}, v43, -v44')
    a(f'''
    v_mul_u32_u24 v4, {VRS}, v2
    v_lshl_add_u32 v4, v3, 2, v4
    v_lshrrev_b32 v5, 3, v{vC}        ; hi
    v_mul_u32_u24 v46, {32*VRS}, v5
    v_mul_u32_u24 v47, {VRS}, v2
    v_add_u32 v46, v46, v47
    v_lshl_add_u32 v{vVR}, v{vQ}, 4, v46
    ''')
    ST()
    a('s_waitcnt vmcnt(0)')
    ST()
    zr = [72, 74, 76, 78]; zi = [80, 82, 84, 86]
    for m in range(8):
        a(f'v_lshlrev_b32 v{zr[m>>1]+(m&1)}, 16, v{Zr+m}')
        a(f'v_and_b32 v{zi[m>>1]+(m&1)}, 0xffff0000, v{Zr+m}')
    res = radix8(a, zr, zi, 48, None, inverse=True)
    t0, t1 = 32, 34
    for p, (x, y) in enumerate(pairs):
        R, I = res[x]
        assert res[y] == (R + 1, I + 1)
        wr, wi = WR + 2 * p, WI + 2 * p
        a(f'v_pk_mul_f32 {pair(t0)}, {pair(I)}, {pair(wi)}')
        a(f'v_pk_mul_f32 {pair(t1)}, {pair(R)}, {pair(wi)}')
        a(f'v_pk_fma_f32 {pair(R)}, {pair(R)}, {pair(wr)}, {pair(t0)} neg_lo:[0,0,1] neg_hi:[0,0,1]')
        a(f'v_pk_fma_f32 {pair(I)}, {pair(I)}, {pair(wr)}, {pair(t1)}')
    for d0 in range(8):
        a(f'v_cvt_pk_bf16_f32 v{8+d0}, v{res[d0][0]}, v{res[d0][1]}')
        a(f'ds_write_b32 v4, v{8+d0} offset:{VB + 8*VRS*d0}')
    a(f'''
    v_bfe_u32 v16, v0, 2, 2           ; r'
    v_and_b32 v17, 3, v0              ; c'
    v_lshrrev_b32 v18, 1, v17
    v_and_b32 v17, 1, v17
    v_lshlrev_b32 v16, 4, v16
    v_lshl_add_u32 v16, v18, 6, v16
    v_lshl_add_u32 v16, v17, 3, v16
    v_lshl_add_u32 v16, v{vQ}, 7, v16
    s_lshl_b32 s26, s3, 11
    s_add_u32 s26, s26, {AB}
    v_add_u32 v16, s26, v16
    v_mul_u32_u24 v17, 912, v2
    v_lshl_add_u32 v17, v{vQ}, 4, v17
    v_lshl_add_u32 v17, v5, 3, v17
    s_lshl_b32 s26, s3, 8
    s_add_u32 s26, s26, {OB}
    v_add_u32 v17, s26, v17
    v_sub_f32 v18, 1.0, v7
    v_cvt_pk_bf16_f32 v18, v18, v18
    v_lshlrev_b32 v18, 16, v18        ; 1-g (bf16)
    s_waitcnt lgkmcnt(0)
    ''')
    ST()
    a('s_barrier')
    ST()
    VF = [48, 52, 56, 60, 72, 76, 80, 84]
    acc = [32, 36, 40, 44]
    for i in range(4):
        for ks in range(2):
            a(f'ds_read_b128 {vr(VF[2*i+ks],4)}, v{vVR} offset:{VB + 8*VRS*i + 64*ks}')
    for t in range(4):
        a(f'ds_read_b64_tr_b16 {vr(8+2*t,2)}, v16 offset:{512*t}')
    for i in range(4):
        for ks in range(2):
            n = 12 - (2 * i + ks + 1)
            a(f's_waitcnt lgkmcnt({n})')
            c = '0' if ks == 0 else vr(acc[i], 4)
            a(f'v_mfma_f32_16x16x32_bf16 {vr(acc[i],4)}, {vr(GF+4*ks,4)}, {vr(VF[2*i+ks],4)}, {c}')
    a('s_waitcnt lgkmcnt(0)')
    for t in range(4):
        if t == 2:
            a('s_cmp_eq_u32 s3, 3')
            a(f's_cbranch_scc1 {name}_epi_done')
        d0, d1 = 8 + 2 * t, 9 + 2 * t
        a(f'v_lshlrev_b32 v20, 16, v{d0}')
        a(f'v_and_b32 v21, 0xffff0000, v{d0}')
        a(f'v_lshlrev_b32 v22, 16, v{d1}')
        a(f'v_and_b32 v23, 0xffff0000, v{d1}')
        for i in range(4):
            a(f'v_mul_f32 v{24+i}, v18, v{acc[i]+t}')
        for i in range(4):
            a(f'v_fmac_f32 v{24+i}, v7, v{20+i}')
        a(f'v_cvt_pk_bf16_f32 v{28+2*(t&1)}, v24, v25')
        a(f'v_cvt_pk_bf16_f32 v{29+2*(t&1)}, v26, v27')
        a(f'ds_write_b64 v17, {vr(28+2*(t&1),2)} offset:{64*t}')
    a.label(f'{name}_epi_done')
    a(f'''
    v_add_u32 v2, 256, v{vTID}
    s_mov_b32 s26, {(2**32 + 55)//56}
    v_mul_hi_u32 v3, v{vTID}, s26
    v_mul_hi_u32 v4, v2, s26
    v_mul_u32_u24 v5, {912 - 896}, v3
    v_lshl_add_u32 v5, v{vTID}, 4, v5
    v_add_u32 v5, {OB}, v5
    v_mul_u32_u24 v6, {912 - 896}, v4
    v_lshl_add_u32 v6, v2, 4, v6
    v_add_u32 v6, {OB}, v6
    s_mul_i32 s26, s4, 7168
    v_lshl_add_u32 v7, v{vTID}, 4, s26
    s_waitcnt lgkmcnt(0)
    ''')
    ST()
    a('s_barrier')
    ST()
    a(f'''
    ds_read_b128 v[8:11], v5
    v_cmp_gt_u32 vcc, 192, v{vTID}
    s_and_saveexec_b64 s[28:29], vcc
    s_cbranch_execz {name}_one
    ds_read_b128 v[12:15], v6
    v_add_u32 v6, 4096, v7
    s_waitcnt lgkmcnt(0)
    global_store_dwordx4 v6, v[12:15], s[8:9]
    ''')
    a.label(f'{name}_one')
    a(f'''
    s_mov_b64 exec, s[28:29]
    s_waitcnt lgkmcnt(0)
    global_store_dwordx4 v7, v[8:11], s[8:9]
    ''')
    ST.flush()
    a.label(f'{name}_end')
    a('s_endpgm')
    return a
```

```python
from mc import *
from m_a import role_a
from m_b import role_b
from m_t import role_t

def gen_m(name):
    a = Asm()
    a.ST = Stamper(a, 0)
    a.ST()
    a(f'''
    s_cmp_ge_u32 s2, 256
    s_cbranch_scc1 {name}_end
    v_lshrrev_b32 v1, 6, v0
    v_and_b32 v0, 63, v0
    v_readfirstlane_b32 s3, v1
    s_load_dwordx2 s[{SDBG}:{SDBG+1}], s[0:1], {KA['dbg']}
    s_load_dwordx2 s[{SWS}:{SWS+1}], s[0:1], {KA['ws']}
    v_mov_b32 v{V1}, 1
    v_mov_b32 v{V0}, 0
    s_cmp_lt_u32 s3, 8
    s_cbranch_scc1 {name}_A
    s_cmp_lt_u32 s3, 12
    s_cbranch_scc1 {name}_B
    s_branch {name}_T
    ''')
    role_a(a, name)
    role_b(a, name)
    role_t(a, name)
    a.label(f'{name}_end')
    a('s_endpgm')
    a.label(f'{name}_codeend')
    return a
```

```python
from mc import *

def role_a(a, name):
    ST = a.ST
    a.label(f'{name}_A')
    ST.reset(1)
    a(f'''
    s_and_b32 s26, s2, 7
    s_cmp_eq_u32 s26, 7
    s_cbranch_scc1 {name}_end
    s_load_dwordx16 s[8:23], s[0:1], 8
    s_lshr_b32 s4, s3, 2            ; dg
    s_lshl_b32 s5, s26, 6
    s_lshr_b32 s27, s2, 3
    s_lshl_b32 s27, s27, 1
    s_add_u32 s5, s5, s27
    s_lshr_b32 s28, s5, 1
    s_lshl_b32 s28, s28, 2
    s_add_u32 s5, s5, s4            ; d
    s_and_b32 s6, s3, 3
    s_lshl_b32 s7, s5, 9
    s_lshl_b32 s26, s6, 7
    s_add_u32 s7, s7, s26
    v_lshl_add_u32 v1, v0, 1, s7
    s_mul_i32 s29, s3, {KR}
    s_add_u32 s29, s29, {KG}        ; KB
    s_lshl_b32 s56, s4, 2
    s_waitcnt lgkmcnt(0)
    s_load_dword s27, s[20:21], s28
    s_load_dword s55, s[22:23], s28
    global_load_ushort v2, v1, s[8:9]
    global_load_ushort v3, v1, s[10:11]
    global_load_ushort v4, v1, s[12:13]
    global_load_ushort v5, v1, s[14:15]
    global_load_ushort v6, v1, s[16:17]
    global_load_ushort v7, v1, s[18:19]
    ''')
    vW, vRA, vRB, vFB, vP = 60, 61, 62, 63, 64
    a(f'''
    v_lshl_add_u32 v{vW}, v0, 2, s29
    v_and_b32 v8, 15, v0                      ; c
    v_lshrrev_b32 v9, 4, v0                   ; q
    v_mul_u32_u24 v10, {KROW}, v8
    v_lshl_add_u32 v10, v9, 4, v10
    v_add_u32 v{vRA}, s29, v10
    v_add_u32 v10, 16, v8
    v_min_u32 v10, 20, v10
    v_mul_u32_u24 v10, {KROW}, v10
    v_lshl_add_u32 v10, v9, 4, v10
    v_add_u32 v{vRB}, s29, v10                ; rows 16..20
    v_lshl_add_u32 v{vP}, v0, 4, s29
    ''')
    vA0, vA8 = 65, 66
    a(f'''
    s_mul_i32 s30, s4, {4*KR}
    s_add_u32 s30, s30, {KG}
    s_mul_i32 s31, s4, 2560
    s_add_u32 s31, s31, {KT}                  ; Kt
    s_lshl_b32 s33, s6, 6
    v_add_u32 v11, s33, v0                    ; blk
    ''')
    def addr_of(dst, blk):
        a(f'''
        v_lshrrev_b32 v12, 5, v{blk}
        v_mov_b32 v14, 16
        v_lshrrev_b32 v13, v12, v14
        v_sub_u32 v13, 16, v13
        v_add_u32 v14, 12, v12
        v_cmp_gt_u32 vcc, 4, v12
        v_cndmask_b32 v13, v14, v13, vcc
        v_and_b32 v14, 31, v{blk}
        v_mul_u32_u24 v14, 80, v14
        v_lshl_add_u32 v14, v13, 1, v14
        v_add_u32 v{dst}, s31, v14
        ''')
    addr_of(vA0, 11)
    a('v_add_u32 v15, 1, v11')
    addr_of(vA8, 15)
    a(f'''
    s_cmp_lg_u32 s6, 0
    s_cbranch_scc1 {name}_a_nz
    v_mov_b32 v12, 0
    v_mov_b32 v13, 0
    v_mov_b32 v14, 0
    v_mov_b32 v15, 0
    s_mul_i32 s33, s4, 4608
    s_add_u32 s33, s33, {KAL}
    v_lshl_add_u32 v16, v0, 4, s33
    s_mov_b32 exec_hi, 0
    ds_write_b128 v16, v[12:15]
    s_mov_b64 exec, -1
    ''')
    a.label(f'{name}_a_nz')
    a('s_barrier')
    a(f'''
    s_waitcnt lgkmcnt(0)
    s_lshl_b32 s34, s27, 16
    s_and_b32 s35, s27, 0xffff0000
    s_cmp_eq_u32 s4, 0
    s_cselect_b32 s34, s34, s35
    s_lshl_b32 s36, s55, 16
    s_and_b32 s35, s55, 0xffff0000
    s_cmp_eq_u32 s4, 0
    s_cselect_b32 s55, s36, s35               ; Dskip f32
    v_mov_b32 v8, s34
    v_mul_f32 v8, {LOG2E}, v8
    v_exp_f32 v8, v8
    v_cvt_pk_bf16_f32 v8, v8, v8
    v_lshlrev_b32 v8, 16, v8                  ; dt
    s_waitcnt vmcnt(0)
    ''')
    ST()
    for r in range(2, 8):
        a(f'v_lshlrev_b32 v{r}, 16, v{r}')
    va, vb = 10, 11
    dB, C, coef = 12, 14, 16
    E1, E8, W256 = 18, 20, 22
    a(f'''
    v_mul_f32 v{va}, v8, v2
    v_mul_f32 v{va}, {LOG2E}, v{va}
    v_mul_f32 v{vb}, v8, v3
    v_mul_f32 v{vb}, 0.15915494, v{vb}
    v_mul_f32 v{dB}, v8, v4
    v_mul_f32 v{dB+1}, v8, v5
    v_mov_b32 v{C}, v6
    v_mov_b32 v{C+1}, v7
    ''')
    cmul(a, coef, C, dB)
    def evalw(dst, e):
        if e == 1:
            a(f'v_exp_f32 v2, v{va}')
            a(f'v_fract_f32 v3, v{vb}')
        else:
            a(f'v_mul_f32 v2, {fl(float(e))}, v{va}')
            a(f'v_mul_f32 v3, {fl(float(e))}, v{vb}')
            a(f'v_exp_f32 v2, v2')
            a(f'v_fract_f32 v3, v3')
        a(f'v_cos_f32 v4, v3')
        a(f'v_sin_f32 v5, v3')
        a(f'v_mul_f32 v{dst}, v2, v4')
        a(f'v_mul_f32 v{dst+1}, v2, v5')
    evalw(E1, 1)
    evalw(W256, 256)
    evalw(E8, 8)
    RW = KROW // 4
    r2, r3, r4, r6, t0, w512, w768, w1024 = 34, 36, 38, 40, 42, 44, 46, 48
    def cv(dst, src): a(f'v_cvt_pk_bf16_f32 v{dst}, v{src}, -v{src+1}')
    def wr2(x, y, o): a(f'ds_write2_b32 v50, v{x}, v{y} offset0:{o*RW} offset1:{(o+1)*RW}')
    def nxt(): a(f'v_add_u32 v50, {4*KROW}, v50')
    q0, q1 = 30, 31
    a(f'v_mov_b32 v50, v{vW}')
    a(f'v_mov_b32 v{q0}, 0x3f80')
    cv(q1, E1); wr2(q0, q1, 0)
    cmul(a, r2, E1, E1); cmul(a, r3, r2, E1)
    cv(q0 + 2, r2); cv(q1 + 2, r3); wr2(q0 + 2, q1 + 2, 2); nxt()
    cmul(a, r4, r2, r2); cmul(a, t0, r4, E1)
    cv(q0, r4); cv(q1, t0); wr2(q0, q1, 0)
    cmul(a, r6, r4, r2); cmul(a, t0, r4, r3)
    cv(q0 + 2, r6); cv(q1 + 2, t0); wr2(q0 + 2, q1 + 2, 2); nxt()
    cmul(a, t0, W256, r2)
    cv(q0, W256); cv(q1, t0); wr2(q0, q1, 0)
    cmul(a, t0, W256, r4); cmul(a, r3, W256, r6)
    cv(q0 + 2, t0); cv(q1 + 2, r3); wr2(q0 + 2, q1 + 2, 2); nxt()
    cmul(a, w512, W256, W256); cmul(a, t0, w512, r4)
    cv(q0, w512); cv(q1, t0); wr2(q0, q1, 0)
    cmul(a, w768, w512, W256); cmul(a, t0, w768, r4)
    cv(q0 + 2, w768); cv(q1 + 2, t0); wr2(q0 + 2, q1 + 2, 2); nxt()
    cmul(a, w1024, w512, w512); cmul(a, t0, w1024, W256)
    cv(q0, w1024); cv(q1, t0); wr2(q0, q1, 0)
    cmul(a, t0, w1024, w512); cmul(a, r3, w1024, w768)
    cv(q0 + 2, t0); cv(q1 + 2, r3); wr2(q0 + 2, q1 + 2, 2); nxt()
    cmul(a, t0, w1024, w1024)
    cv(q0, t0)
    a(f'ds_write_b32 v50, v{q0}')
    RF, FF, acc = 68, 100, 32
    for rt in range(2):
        for ks in range(4):
            a(f'ds_read_b128 {vr(RF+16*rt+4*ks,4)}, v{vRA if rt == 0 else vRB} offset:{64*ks}')
    ST()
    fa, fb, tmp, E16 = 16, 24, 26, 28
    c0, c1 = 52, 53
    cmul(a, fb, fa, E8)
    cmul(a, E16, E8, E8)
    for h in range(2):
        a(f'v_mov_b32 v50, v{vW}')
        a('s_mov_b32 s37, 4')
        L = uid('f')
        a.label(L)
        a(f'v_cvt_pk_bf16_f32 v{c0}, v{fa}, v{fa+1}')
        a(f'v_cvt_pk_bf16_f32 v{c1}, v{fb}, v{fb+1}')
        cmul(a, fa, fa, E16, tmp)
        a(f'ds_write2_b32 v50, v{c0}, v{c1} offset0:0 offset1:{RW}')
        cmul(a, fb, fb, E16, tmp)
        a(f'v_cvt_pk_bf16_f32 v{c0+2}, v{fa}, v{fa+1}')
        a(f'v_cvt_pk_bf16_f32 v{c1+2}, v{fb}, v{fb+1}')
        cmul(a, fa, fa, E16, tmp)
        a(f'ds_write2_b32 v50, v{c0+2}, v{c1+2} offset0:{2*RW} offset1:{3*RW}')
        cmul(a, fb, fb, E16, tmp)
        a(f'v_add_u32 v50, {4*KROW}, v50')
        a('s_sub_u32 s37, s37, 1')
        a('s_cmp_lg_u32 s37, 0')
        a(f's_cbranch_scc1 {L}')
        for ks in range(4):
            a(f'ds_read_b128 {vr(FF+4*ks,4)}, v{vRA} offset:{64*ks}')
        for ks in range(4):
            a(f's_waitcnt lgkmcnt({3-ks})')
            for rt in range(2):
                d = acc + 8 * rt + 4 * h
                a(f'v_mfma_f32_16x16x32_bf16 {vr(d,4)}, {vr(RF+16*rt+4*ks,4)}, {vr(FF+4*ks,4)}, {"0" if ks == 0 else vr(d,4)}')
    for rt in range(2):
        for h in range(2):
            a(f'ds_write_b128 v{vP}, {vr(acc+8*rt+4*h,4)} offset:{1024*(2*rt+h)}')
    ST()
    gbar(a, B_K1, 4, 56)
    ST()
    a(f'''
    s_lshl_b32 s33, s6, 10
    s_add_u32 s33, s33, s30
    v_lshl_add_u32 v2, v0, 4, s33
    ds_read_b128 v[4:7], v2
    ds_read_b128 v[8:11], v2 offset:{KR}
    ds_read_b128 v[12:15], v2 offset:{2*KR}
    ds_read_b128 v[16:19], v2 offset:{3*KR}
    v_and_b32 v20, 15, v0
    s_and_b32 s33, s6, 1
    s_lshl_b32 s33, s33, 4
    v_add_u32 v20, s33, v20
    v_mul_u32_u24 v20, 80, v20
    v_lshrrev_b32 v21, 4, v0
    v_lshl_add_u32 v20, v21, 3, v20
    s_lshr_b32 s33, s6, 1
    s_lshl_b32 s33, s33, 5
    s_add_u32 s33, s33, s31
    v_add_u32 v20, s33, v20
    s_waitcnt lgkmcnt(2)
    v_pk_add_f32 v[4:5], v[4:5], v[8:9]
    v_pk_add_f32 v[6:7], v[6:7], v[10:11]
    s_waitcnt lgkmcnt(0)
    v_pk_add_f32 v[12:13], v[12:13], v[16:17]
    v_pk_add_f32 v[14:15], v[14:15], v[18:19]
    v_pk_add_f32 v[4:5], v[4:5], v[12:13]
    v_pk_add_f32 v[6:7], v[6:7], v[14:15]
    v_cvt_pk_bf16_f32 v4, v4, v5
    v_cvt_pk_bf16_f32 v5, v6, v7
    ds_write_b64 v20, v[4:5]
    ''')
    gbar(a, B_K2, 4, 56)
    a(f'''
    s_mov_b32 s40, 0x01000100
    s_mov_b32 s41, 0x03020302
    s_mov_b32 s42, 0x05040302
    s_mov_b32 s43, 0x05040100
    ds_read_u16 v9, v{vA8}
    s_cmp_eq_u32 s6, 0
    s_cbranch_scc1 {name}_kx0
    s_cmp_eq_u32 s6, 1
    s_cbranch_scc1 {name}_kx1
    ds_read_u16 v8, v{vA0}
    v_and_b32 v10, 1, v0
    v_cmp_eq_u32 vcc, 1, v10
    s_waitcnt lgkmcnt(0)
    v_perm_b32 v4, v8, v8, s40
    v_cndmask_b32 v10, v8, v9, vcc
    v_perm_b32 v7, v9, v9, s40
    v_mov_b32 v5, v4
    v_perm_b32 v6, v9, v10, s43
    s_branch {name}_kxs
    ''')
    a.label(f'{name}_kx1')
    a(f'''
    ds_read_b32 v8, v{vA0}
    s_waitcnt lgkmcnt(0)
    v_perm_b32 v4, v8, v8, s40
    v_mov_b32 v5, v8
    v_perm_b32 v6, v8, v8, s41
    v_perm_b32 v7, v9, v9, s40
    s_branch {name}_kxs
    ''')
    a.label(f'{name}_kx0')
    a(f'''
    ds_read_b128 v[12:15], v{vA0}
    v_cmp_gt_u32 vcc, 32, v0
    s_waitcnt lgkmcnt(0)
    v_perm_b32 v4, v12, v12, s40
    v_perm_b32 v5, v13, v12, s42
    v_perm_b32 v6, v13, v13, s40
    v_perm_b32 v7, v9, v13, s42
    v_cndmask_b32 v4, v4, v12, vcc
    v_cndmask_b32 v5, v5, v13, vcc
    v_cndmask_b32 v6, v6, v14, vcc
    v_cndmask_b32 v7, v7, v15, vcc
    ''')
    a.label(f'{name}_kxs')
    a(f'''
    s_mul_i32 s33, s4, 4608
    s_lshl_b32 s34, s6, 10
    s_add_u32 s33, s33, s34
    s_add_u32 s33, s33, {KAL + 512}
    v_lshl_add_u32 v2, v0, 4, s33
    ds_write_b128 v2, v[4:7]
    s_waitcnt lgkmcnt(0)
    ''')
    lds_sig_s(a, C_KR, 56)
    ST()
    a(f'''
    s_add_u32 s33, s3, 2
    s_and_b32 s33, s33, 7
    s_cmp_lt_u32 s33, 4
    s_cbranch_scc1 {name}_conv
    ''')
    if STAMPS: ST.flush()
    a('s_endpgm')
    conv(a, name)

def conv(a, name):
    ST = a.ST
    a.label(f'{name}_conv')
    a(f'''
    s_and_b32 s6, s3, 1               ; hf
    s_mul_i32 s7, s4, {2*UC}
    s_add_u32 s7, s7, {UC0}           ; U base
    s_mul_i32 s29, s4, 4608
    s_add_u32 s29, s29, {KAL}         ; K base
    v_lshlrev_b32 v1, 4, v0
    ''')
    acc, UF, KF = 60, 92, 28
    vU, vK = 4, 9
    a(f'''
    v_and_b32 v10, 15, v0             ; c
    v_lshrrev_b32 v11, 4, v0          ; q
    v_lshrrev_b32 v12, 1, v11
    v_and_b32 v13, 1, v11
    v_lshlrev_b32 v14, 4, v13
    v_lshlrev_b32 v15, 5, v12
    v_sub_u32 v14, v14, v15           ; 16(q&1) - 32(q>>1)
    v_and_b32 v15, 1, v10
    v_xor_b32 v15, 1, v15                ; sigma = 1 - (c&1)
    v_mul_u32_u24 v15, {UC}, v15
    v_lshrrev_b32 v16, 1, v10
    v_lshlrev_b32 v16, 2, v16
    v_sub_u32 v15, v15, v16
    v_add_u32 v15, v15, v14
    s_lshl_b32 s31, s6, 8
    s_sub_u32 s33, s7, s31
    s_add_u32 s34, s33, {4092 - 3584}
    v_add_u32 v{vU}, s34, v15
    v_add_u32 v{vU+1}, 1024, v{vU}
    v_add_u32 v{vU+2}, 2048, v{vU}
    v_add_u32 v{vU+3}, 3072, v{vU}
    v_lshl_add_u32 v16, v10, 5, v14
    s_sub_u32 s33, s29, s31
    s_add_u32 s34, s33, 512
    v_add_u32 v{vK}, s34, v16
    ''')
    for r in range(32):
        a(f'v_mov_b32 v{acc+r}, 0')
    lds_wait(a, C_KR, 4, 56)
    lds_wait(a, C_DU, 4)
    ST()
    a('s_mov_b32 s35, 4')
    L = uid('c')
    a.label(L)
    UFr = lambda k: UF + 4 * k
    def ld(k):
        a(f'ds_read_b128 {vr(KF+4*k,4)}, v{vK} offset:{512*k}')
        j = 7 - k
        o = 128 * (j & 1)
        a(f'ds_read2_b32 {vr(UFr(k),2)}, v{vU+(j>>1)} offset0:{o} offset1:{o+1}')
        a(f'ds_read2_b32 {vr(UFr(k)+2,2)}, v{vU+(j>>1)} offset0:{o+2} offset1:{o+3}')
    def mm(nu, e):
        mt = nu + e
        a(f'v_mfma_f32_16x16x32_bf16 {vr(acc+4*mt,4)}, {vr(UFr(nu),4)}, {vr(KF+4*e,4)}, {vr(acc+4*mt,4)}')
    for k in range(5): ld(k)
    for k in range(8):
        a(f's_waitcnt lgkmcnt({12 if k <= 3 else 3*(7-k)})')
        prs = []
        for o in range(k + 1):
            if k + o <= 7:
                prs.append((k, o))
                if o != k: prs.append((o, k))
        prs.sort(key=lambda p: (min(p), p[0]))
        for (nu, e) in prs: mm(nu, e)
        if k + 5 <= 7: ld(k + 5)
    a(f'''
    v_subrev_u32 v{vU}, 64, v{vU}
    v_subrev_u32 v{vU+1}, 64, v{vU+1}
    v_subrev_u32 v{vU+2}, 64, v{vU+2}
    v_subrev_u32 v{vU+3}, 64, v{vU+3}
    v_subrev_u32 v{vK}, 64, v{vK}
    s_sub_u32 s35, s35, 1
    s_cmp_lg_u32 s35, 0
    s_cbranch_scc1 {L}
    ''')
    ST()
    a('s_xor_b32 s57, s56, 4')
    lds_wait(a, C_KR, 4, 57)
    a(f'''
    s_lshl_b32 s31, s4, 1
    s_add_u32 s31, s31, s6            ; cidx
    s_lshl_b32 s33, s31, 12
    s_add_u32 s33, s33, {RB}
    v_add_u32 v2, s33, v1
    s_xor_b32 s33, s31, 1
    s_lshl_b32 s33, s33, 12
    s_add_u32 s33, s33, {RB}
    v_add_u32 v3, s33, v1
    s_cmp_eq_u32 s6, 0
    s_cbranch_scc0 {name}_cx1
    ''')
    for k in range(4): a(f'ds_write_b128 v2, {vr(acc+16+4*k,4)} offset:{1024*k}')
    a(f's_branch {name}_cx2')
    a.label(f'{name}_cx1')
    for k in range(4): a(f'ds_write_b128 v2, {vr(acc+4*k,4)} offset:{1024*k}')
    a('s_waitcnt lgkmcnt(0)')
    for r in range(16): a(f'v_mov_b32 v{acc+r}, v{acc+16+r}')
    a.label(f'{name}_cx2')
    a(f'''
    v_lshlrev_b32 v16, 5, v10
    v_lshl_add_u32 v16, v11, 3, v16       ; 32c + 8g
    s_lshl_b32 s34, s6, 11                ; 2048*hf
    s_sub_u32 s36, s7, s34
    s_add_u32 s36, s36, {4088 - 1536}
    v_sub_u32 v17, s36, v16
    v_and_b32 v18, 1, v11
    v_mul_u32_u24 v18, {512 - 8}, v18
    v_add_u32 v18, v18, v16
    s_lshl_b32 s36, s5, 12
    s_add_u32 s36, s36, s34
    s_add_u32 s36, s36, {WS_AT}
    v_add_u32 v18, s36, v18
    ''')
    gbar(a, B_CV, 2, 56)
    for k in range(4):
        a(f'ds_read_b128 {vr(28+4*k,4)}, v3 offset:{1024*k}')
        a(f'ds_read_b64 {vr(44+2*k,2)}, v17 offset:{512*(3-k)}')
    for k in range(4):
        a(f's_waitcnt lgkmcnt({6-2*k})')
        y = acc + 4 * k
        a(f'v_pk_add_f32 {pair(y)}, {pair(y)}, {pair(28+4*k)}')
        a(f'v_pk_add_f32 {pair(y+2)}, {pair(y+2)}, {pair(30+4*k)}')
        d0, d1 = 44 + 2 * k, 45 + 2 * k
        a(f'v_and_b32 v20, 0xffff0000, v{d1}')
        a(f'v_lshlrev_b32 v21, 16, v{d1}')
        a(f'v_and_b32 v22, 0xffff0000, v{d0}')
        a(f'v_lshlrev_b32 v23, 16, v{d0}')
        for t in range(4):
            a(f'v_fmac_f32 v{y+t}, s55, v{20+t}')
        a(f'v_cvt_pk_bf16_f32 v{52+2*k}, v{y}, v{y+1}')
        a(f'v_cvt_pk_bf16_f32 v{53+2*k}, v{y+2}, v{y+3}')
        if k & 1:
            b = 52 + 2 * (k - 1)
            a(f'v_permlane16_swap_b32 v{b}, v{b+2}')
            a(f'v_permlane16_swap_b32 v{b+1}, v{b+3}')
            a(f'global_store_dwordx4 v18, {vr(b,4)}, s[{SWS}:{SWS+1}] offset:{1024*(k>>1)} sc1')
    a('s_waitcnt vmcnt(0)')
    nl = uid('n')
    lds_sig_last(a, C_SIG3, 4, nl)
    gsignal(a, 2)
    a.label(nl)
    if STAMPS: ST.flush()
    a('s_endpgm')
```

```python
from mc import *

def role_b(a, name):
    b1(a, name)
    b2(a, name)
    p3(a, name)

def b1(a, name):
    ST = a.ST
    a.label(f'{name}_B')
    ST.reset(1)
    a(f'''
    s_load_dwordx2 s[8:9], s[0:1], {KA['u']}
    s_load_dwordx2 s[10:11], s[0:1], {KA['gate_w']}
    s_sub_u32 s4, s3, 8               ; v
    s_and_b32 s5, s4, 1
    s_lshl_b32 s6, s2, 1
    s_add_u32 s5, s5, s6              ; b4
    s_lshr_b32 s6, s4, 1              ; kt
    s_mul_i32 s7, s4, {B1S}
    s_add_u32 s7, s7, {B1R}           ; LB
    s_mul_i32 s26, s5, {4*896}
    v_lshl_add_u32 v1, v0, 4, s26
    v_lshlrev_b32 v2, 4, v0
    s_memrealtime s[50:51]
    s_waitcnt lgkmcnt(0)
    s_or_b32 s50, s50, 1
    s_or_b32 s27, s4, s2
    s_cmp_lg_u32 s27, 0
    s_cbranch_scc1 {name}_b_np
    v_lshlrev_b32 v3, 6, v0
    v_mov_b32 v4, s50
    s_mov_b64 exec, 15
    global_store_dword v3, v4, s[{SDBG}:{SDBG+1}] sc1
    s_mov_b64 exec, -1
    ''')
    a.label(f'{name}_b_np')
    srd(a, 12, 8, XBYTES)
    srd(a, 16, 10, 896)
    for r in range(4):
        a(f's_add_u32 m0, s7, {1056*r}')
        a(f's_mov_b32 s27, {896*r}')
        a(f'buffer_load_dwordx4 v1, s[12:15], s27 offen lds')
    a(f's_add_u32 m0, s7, {1056*4}')
    a(f's_nop 0')
    a(f'buffer_load_dwordx4 v2, s[16:19], 0 offen lds')
    a('s_barrier')
    a('s_setprio 3')
    Cf, Sf, WR, WI = 4, 12, 20, 28
    kf, base, a0, a1, c0, c1 = 36, 37, 38, 39, 40, 41
    a(f'''
    v_and_b32 v3, 15, v0
    s_lshl_b32 s27, s6, 4
    v_add_u32 v3, s27, v3                 ; kappa
    v_cvt_f32_u32 v42, v3
    v_mul_f32 v{kf}, {fl(1/56)}, v42
    v_lshrrev_b32 v43, 4, v0              ; q
    v_cvt_f32_u32 v44, v43
    v_mul_f32 v44, {fl(8.0)}, v44
    v_mul_f32 v{base}, v{kf}, v44
    ''')
    for ks in range(2):
        for jj in range(4):
            k0 = 32 * ks + 2 * jj
            a(f'v_fmamk_f32 v{a0}, v{kf}, {fl(float(k0))}, v{base}')
            a(f'v_fmamk_f32 v{a1}, v{kf}, {fl(float(k0+1))}, v{base}')
            a(f'v_cos_f32 v{c0}, v{a0}')
            a(f'v_cos_f32 v{c1}, v{a1}')
            a(f'v_sin_f32 v{a0}, v{a0}')
            a(f'v_sin_f32 v{a1}, v{a1}')
            a(f'v_cvt_pk_bf16_f32 v{Cf+4*ks+jj}, v{c0}, v{c1}')
            a(f'v_cvt_pk_bf16_f32 v{Sf+4*ks+jj}, -v{a0}, -v{a1}')
    a('v_cmp_ne_u32 vcc, 3, v43')
    for jj in range(4):
        a(f'v_cndmask_b32 v{Cf+4+jj}, 0, v{Cf+4+jj}, vcc')
        a(f'v_cndmask_b32 v{Sf+4+jj}, 0, v{Sf+4+jj}, vcc')
    a(f'v_mul_f32 v{kf}, {fl(-1/448)}, v42')
    a(f'v_mov_b32 v{WR}, 1.0')
    a(f'v_mov_b32 v{WI}, 0')
    for d0 in range(1, 8):
        a(f'v_mul_f32 v{a0}, {fl(float(d0))}, v{kf}')
        a(f'v_cos_f32 v{WR+d0}, v{a0}')
        a(f'v_sin_f32 v{WI+d0}, v{a0}')
    vT, vG = 45, 46
    a(f'''
    v_and_b32 v47, 3, v0
    v_bfe_u32 v48, v0, 2, 2
    v_lshlrev_b32 v49, 7, v43
    v_lshl_add_u32 v49, v48, 4, v49
    v_add_u32 v49, s7, v49
    v_mul_u32_u24 v50, 1056, v47
    v_add_u32 v{vT}, v49, v50
    v_and_b32 v50, 1, v47
    v_lshl_add_u32 v{vG}, v50, 3, v49
    ''')
    FA, GB = 48, 64
    ST()
    a('s_waitcnt vmcnt(0)')
    ST()
    for tile in range(2):
        for ks in range(2):
            for rd in range(2):
                a(f'ds_read_b64_tr_b16 {vr(FA+8*tile+4*ks+2*rd,2)}, v{vT} offset:{512*ks+64*rd+8*tile}')
    for ks in range(2):
        for rd in range(2):
            a(f'ds_read_b64_tr_b16 {vr(GB+4*ks+2*rd,2)}, v{vG} offset:{4*1056+512*ks+64*rd}')
    aC, aS, aG = 72, 80, 88
    a('s_waitcnt lgkmcnt(4)')
    for tile in range(2):
        for ks in range(2):
            c = '0' if ks == 0 else vr(aC + 4 * tile, 4)
            a(f'v_mfma_f32_16x16x32_bf16 {vr(aC+4*tile,4)}, {vr(FA+8*tile+4*ks,4)}, {vr(Cf+4*ks,4)}, {c}')
            c = '0' if ks == 0 else vr(aS + 4 * tile, 4)
            a(f'v_mfma_f32_16x16x32_bf16 {vr(aS+4*tile,4)}, {vr(FA+8*tile+4*ks,4)}, {vr(Sf+4*ks,4)}, {c}')
    a('s_waitcnt lgkmcnt(0)')
    for tile in range(2):
        for ks in range(2):
            c = '0' if ks == 0 else vr(aG + 4 * tile, 4)
            a(f'v_mfma_f32_16x16x32_bf16 {vr(aG+4*tile,4)}, {vr(FA+8*tile+4*ks,4)}, {vr(GB+4*ks,4)}, {c}')
    t0, t1 = 96, 98
    zr = [aC, aC + 2, aC + 4, aC + 6]; zi = [aS, aS + 2, aS + 4, aS + 6]
    for p in range(4):
        a(f'v_pk_mul_f32 {pair(t0)}, {pair(zi[p])}, {pair(WI+2*p)}')
        a(f'v_pk_mul_f32 {pair(t1)}, {pair(zr[p])}, {pair(WI+2*p)}')
        a(f'v_pk_fma_f32 {pair(zr[p])}, {pair(zr[p])}, {pair(WR+2*p)}, {pair(t0)} neg_lo:[0,0,1] neg_hi:[0,0,1]')
        a(f'v_pk_fma_f32 {pair(zi[p])}, {pair(zi[p])}, {pair(WR+2*p)}, {pair(t1)}')
    res = radix8(a, zr, zi, 100, None, inverse=False)
    O = 48
    for m in range(8):
        a(f'v_cvt_pk_bf16_f32 v{O+m}, v{res[m][0]}, v{res[m][1]}')
    a(f'''
    v_and_b32 v2, 15, v0
    v_lshlrev_b32 v2, 4, v2
    v_lshl_add_u32 v2, v43, 2, v2
    v_add_u32 v2, s7, v2
    ''')
    for m in range(8):
        a(f'ds_write_b32 v2, v{O+m} offset:{256*m}')
    a(f'''
    v_lshl_add_u32 v2, v0, 4, s7
    ds_read_b128 v[56:59], v2
    ds_read_b128 v[60:63], v2 offset:1024
    s_lshl_b32 s26, s5, 12
    s_lshl_b32 s27, s6, 11
    s_add_u32 s26, s26, s27
    s_add_u32 s26, s26, {WS_X1}
    v_lshl_add_u32 v3, v0, 4, s26
    s_waitcnt lgkmcnt(1)
    global_store_dwordx4 v3, v[56:59], s[{SWS}:{SWS+1}] sc1
    s_waitcnt lgkmcnt(0)
    global_store_dwordx4 v3, v[60:63], s[{SWS}:{SWS+1}] offset:1024 sc1
    s_cmp_lg_u32 s6, 0
    s_cbranch_scc1 {name}_b1_ng
    ''')
    a(f'v_mov_b32 v2, v{aG}')
    for k in range(1, 8):
        a(f'v_add_f32_dpp v2, v{aG+k}, v2 row_shl:{k} row_mask:0xf bank_mask:0xf')
    a(f'''
    v_cvt_pk_bf16_f32 v2, v2, v2
    v_lshlrev_b32 v2, 16, v2
    v_mul_f32 v2, {fl(-math.log2(math.e))}, v2
    v_exp_f32 v2, v2
    v_add_f32 v2, 1.0, v2
    v_rcp_f32 v2, v2
    v_cvt_pk_bf16_f32 v2, v2, v2
    v_lshlrev_b32 v2, 16, v2
    s_lshl_b32 s26, s5, 4
    s_add_u32 s26, s26, {WS_GT}
    v_lshl_add_u32 v3, v43, 2, s26
    v_and_b32 v4, 15, v0
    v_cmp_eq_u32 vcc, 0, v4
    s_and_saveexec_b64 s[28:29], vcc
    global_store_dword v3, v2, s[{SWS}:{SWS+1}] sc1
    s_mov_b64 exec, -1
    ''')
    a.label(f'{name}_b1_ng')
    ST()
    a(f'''
    s_cmp_lg_u32 s4, 0
    s_cbranch_scc1 {name}_b1_nf
    s_and_b32 s26, s2, 3
    s_lshl_b32 s26, s26, 6
    v_mov_b32 v3, s26
    s_mov_b32 s59, 0
    s_mov_b64 exec, 1
    ''')
    a.label(f'{name}_b1_n2')
    a(f'''
    global_load_dword v4, v3, s[{SDBG}:{SDBG+1}] sc1
    s_waitcnt vmcnt(0)
    v_readfirstlane_b32 s50, v4
    s_cmp_lg_u32 s50, 0
    s_cbranch_scc1 {name}_b1_n3
    s_add_u32 s59, s59, 1
    s_cmp_gt_u32 s59, {SPIN_MAX >> 4}
    s_cbranch_scc1 {name}_b1_n3
    s_sleep 8
    s_branch {name}_b1_n2
    ''')
    a.label(f'{name}_b1_n3')
    a(f'''
    ds_write_b32 v{V0}, v4 offset:{N_NONCE}
    s_waitcnt lgkmcnt(0)
    s_mov_b64 exec, -1
    ''')
    a.label(f'{name}_b1_nf')
    a('s_waitcnt vmcnt(0)')
    nl = uid('n')
    lds_sig_last(a, C_SIG1, 8, nl)
    gsignal(a, 0)
    a.label(nl)
    a('s_setprio 0')
    ST()

def b2(a, name):
    ST = a.ST
    a(f'''
    s_cmp_ge_u32 s2, 232
    s_cbranch_scc1 {name}_p3
    s_and_b32 s5, s2, 7               ; m
    s_lshr_b32 s6, s2, 3              ; kappa
    s_lshl_b32 s26, s5, 5
    s_add_u32 s26, s26, s6            ; col
    s_lshl_b32 s28, s26, 13           ; col*8192
    v_and_b32 v122, 15, v0            ; c
    v_lshrrev_b32 v123, 4, v0         ; q / g
    v_lshrrev_b32 v3, 1, v122
    v_lshlrev_b32 v3, 6, v3
    v_and_b32 v4, 1, v122
    v_lshl_add_u32 v3, v4, 4, v3
    v_lshl_add_u32 v3, v123, 9, v3
    s_lshl_b32 s29, s4, 11
    s_add_u32 s29, s29, s28
    s_add_u32 s29, s29, {WS_WT}
    v_add_u32 v3, s29, v3             ; W address
    ''')
    Wv = 12
    Bre, Bim = 32, 48
    Cc, Ss = 64, 72
    TW1r, TW1i = 80, 88
    pf, base, an, cs, sn = 20, 21, 22, 23, 24
    a(f'''
    s_lshl_b32 s30, s4, 4
    v_add_u32 v25, s30, v122           ; p1 = 16v+c
    v_cvt_f32_u32 v26, v25
    v_cvt_f32_u32 v27, v123            ; q
    v_mul_f32 v28, 4.0, v27           ; 4q
    v_mul_f32 v{pf}, {fl(1/64)}, v26
    v_mul_f32 v{base}, v{pf}, v28
    ''')
    for ks in range(4):
        for t in range(4):
            a(f'v_fmamk_f32 v{an}, v{pf}, {fl(float(16*ks+t))}, v{base}')
            a(f'v_cos_f32 v{cs}, v{an}')
            a(f'v_sin_f32 v{sn}, v{an}')
            a(f'v_cvt_pk_bf16_f32 v{Bre+4*ks+t}, v{cs}, v{sn}')
            a(f'v_cvt_pk_bf16_f32 v{Bim+4*ks+t}, -v{sn}, v{cs}')
    for T in range(2):
        a(f'v_cvt_f32_u32 v29, v122')
        if T: a(f'v_add_f32 v29, {fl(16.0)}, v29')
        a(f'v_mul_f32 v{pf}, {fl(1/32)}, v29')
        a(f'v_mul_f32 v{base}, v{pf}, v28')
        for jj in range(4):
            j0 = 2 * jj
            r0 = 16 * (j0 >> 2) + (j0 & 3)
            a(f'v_fmamk_f32 v{an}, v{pf}, {fl(float(r0))}, v{base}')
            a(f'v_fmamk_f32 v30, v{pf}, {fl(float(r0+1))}, v{base}')
            a(f'v_cos_f32 v{cs}, v{an}')
            a(f'v_cos_f32 v{sn}, v30')
            a(f'v_sin_f32 v{an}, v{an}')
            a(f'v_sin_f32 v30, v30')
            a(f'v_cvt_pk_bf16_f32 v{Cc+4*T+jj}, v{cs}, v{sn}')
            a(f'v_cvt_pk_bf16_f32 v{Ss+4*T+jj}, v{an}, v30')
    a(f'v_mul_f32 v{pf}, {fl(-1/2048)}, v26')
    a(f'v_mul_f32 v{base}, v{pf}, v28')
    for T in range(2):
        for t in range(4):
            a(f'v_fmamk_f32 v{an}, v{pf}, {fl(float(16*T+t))}, v{base}')
            a(f'v_cos_f32 v{TW1r+4*T+t}, v{an}')
            a(f'v_sin_f32 v{TW1i+4*T+t}, v{an}')
    a(f'v_cvt_f32_u32 v29, s30')
    a(f'v_add_f32 v29, v29, v28')
    a(f'v_lshl_add_u32 v31, v0, 4, s7')
    for T in range(2):
        a(f'v_cvt_f32_u32 v30, v122')
        if T: a(f'v_add_f32 v30, {fl(16.0)}, v30')
        a(f'v_mul_f32 v{pf}, {fl(-1/2048)}, v30')
        a(f'v_mul_f32 v{base}, v{pf}, v29')
        for t in range(4):
            if t == 0: a(f'v_mov_b32 v{an}, v{base}')
            else: a(f'v_fmamk_f32 v{an}, v{pf}, {fl(float(t))}, v{base}')
            a(f'v_cos_f32 v{96+t}, v{an}')
            a(f'v_sin_f32 v{100+t}, v{an}')
        a(f'ds_write_b128 v31, v[96:99] offset:{2048*T}')
        a(f'ds_write_b128 v31, v[100:103] offset:{2048*T+1024}')
    a(f'''
    v_and_b32 v4, 1, v123
    v_lshlrev_b32 v5, 2, v122
    v_lshl_add_u32 v5, v123, 9, v5
    v_add_u32 v5, {XC}, v5
    v_lshl_add_u32 v1, v4, 6, v5          ; T=0
    v_xor_b32 v4, 1, v4
    v_lshl_add_u32 v2, v4, 6, v5          ; T=1
    ''')
    ST()
    lds_wait(a, F_S1, 1)
    a('s_setprio 3')
    a(f'global_load_dwordx4 {vr(Wv,4)}, v3, s[{SWS}:{SWS+1}] sc1')
    a(f'global_load_dwordx4 {vr(Wv+4,4)}, v3, s[{SWS}:{SWS+1}] offset:32 sc1')
    lds_wait(a, C_DX, 4)
    ST()
    fa = [[96, 100, 104, 108], [8, 20, 24, 96]]
    accR = [28, 112]; accI = [4, 116]
    def rdfrag(T, ks):
        ad = 1 + T
        if ks: a(f'v_add_u32 v{ad}, 2048, v{ad}')
        r = fa[T][ks]
        a(f'ds_read2_b32 {vr(r,2)}, v{ad} offset0:0 offset1:32')
        a(f'ds_read2_b32 {vr(r+2,2)}, v{ad} offset0:64 offset1:96')
    for T in range(2):
        for ks in range(4):
            if (T, ks) != (1, 3): rdfrag(T, ks)
    def mf(d, A, B, first):
        a(f'v_mfma_f32_16x16x32_bf16 {vr(d,4)}, {vr(A,4)}, {vr(B,4)}, {"0" if first else vr(d,4)}')
    for T in range(2):
        for ks in range(4):
            f = 4 * T + ks
            n_out = (14 if f == 0 else 16) - 2 * (f + 1)
            a(f's_waitcnt lgkmcnt({min(n_out,15)})')
            mf(accR[T], fa[T][ks], Bre + 4 * ks, ks == 0)
            mf(accI[T], fa[T][ks], Bim + 4 * ks, ks == 0)
            if f == 0: rdfrag(1, 3)
    t0, t1 = 96, 98
    def ctw(R, I, wr, wi):
        for p in range(2):
            a(f'v_pk_mul_f32 {pair(t0)}, {pair(I+2*p)}, {pair(wi+2*p)}')
            a(f'v_pk_mul_f32 {pair(t1)}, {pair(R+2*p)}, {pair(wi+2*p)}')
            a(f'v_pk_fma_f32 {pair(R+2*p)}, {pair(R+2*p)}, {pair(wr+2*p)}, {pair(t0)} neg_lo:[0,0,1] neg_hi:[0,0,1]')
            a(f'v_pk_fma_f32 {pair(I+2*p)}, {pair(I+2*p)}, {pair(wr+2*p)}, {pair(t1)}')
    XR, XI, XN = 100, 104, 108
    def deint(negate_im):
        for T in range(2):
            for p in range(2):
                r0, r1 = accR[T] + 2 * p, accR[T] + 2 * p + 1
                i0, i1 = accI[T] + 2 * p, accI[T] + 2 * p + 1
                a(f'v_cvt_pk_bf16_f32 v{XR+2*T+p}, v{r0}, v{r1}')
                if not negate_im:
                    a(f'v_cvt_pk_bf16_f32 v{XI+2*T+p}, v{i0}, v{i1}')
                else:
                    a(f'v_cvt_pk_bf16_f32 v{XI+2*T+p}, -v{i0}, -v{i1}')
                a(f'v_cvt_pk_bf16_f32 v{XN+2*T+p}, -v{r0}, -v{r1}')
    for T in range(2):
        ctw(accR[T], accI[T], TW1r + 4 * T, TW1i + 4 * T)
    deint(False)
    for T2 in range(2):
        mf(accR[T2], Cc + 4 * T2, XR, True)
        mf(accI[T2], Cc + 4 * T2, XI, True)
        mf(accR[T2], Ss + 4 * T2, XI, False)
        mf(accI[T2], Ss + 4 * T2, XN, False)
    a(f'v_lshl_add_u32 v1, v0, 4, s7')
    for T in range(2):
        a(f'ds_read_b128 {vr(TW1r+4*T,4)}, v1 offset:{2048*T}')
        a(f'ds_read_b128 {vr(TW1i+4*T,4)}, v1 offset:{2048*T+1024}')
    a('s_waitcnt vmcnt(0)')
    wr, wi = 20, 24
    for T2 in range(2):
        for t in range(4):
            a(f'v_lshlrev_b32 v{wr+t}, 16, v{Wv+4*T2+t}')
            a(f'v_and_b32 v{wi+t}, 0xffff0000, v{Wv+4*T2+t}')
        ctw(accR[T2], accI[T2], wr, wi)
    deint(True)
    for T3 in range(2):
        mf(accR[T3], XR, Cc + 4 * T3, True)
        mf(accI[T3], XI, Cc + 4 * T3, True)
        mf(accR[T3], XI, Ss + 4 * T3, False)
        mf(accI[T3], XN, Ss + 4 * T3, False)
    a(f'''
    v_mul_u32_u24 v2, 288, v122
    s_lshl_b32 s30, s4, 6
    s_add_u32 s30, s30, {EB}
    v_lshl_add_u32 v2, v123, 4, v2
    v_add_u32 v1, s30, v2
    v_add_u32 v2, {EB}, v2
    s_waitcnt lgkmcnt(0)
    ''')
    FB = 12
    for T3 in range(2):
        ctw(accR[T3], accI[T3], TW1r + 4 * T3, TW1i + 4 * T3)
        for t in range(4):
            a(f'v_cvt_pk_bf16_f32 v{FB+4*T3+t}, v{accR[T3]+t}, v{accI[T3]+t}')
        a(f'ds_write_b128 v1, {vr(FB+4*T3,4)} offset:{16*288*T3}')
    ST()
    gbar(a, B_B2, 4)
    fa4 = [[96, 100, 104, 108], [80, 84, 88, 92]]
    for T4 in range(2):
        for ks in range(4):
            a(f'ds_read_b128 {vr(fa4[T4][ks],4)}, v2 offset:{16*288*T4+64*ks}')
    for T4 in range(2):
        for ks in range(4):
            a(f's_waitcnt lgkmcnt({7-4*T4-ks})')
            mf(accR[T4], fa4[T4][ks], Bre + 4 * ks, ks == 0)
            mf(accI[T4], fa4[T4][ks], Bim + 4 * ks, ks == 0)
    a(f'''
    v_lshlrev_b32 v1, 7, v122
    v_lshl_add_u32 v1, v123, 4, v1
    s_lshl_b32 s30, s4, 11
    s_add_u32 s30, s30, s28
    s_add_u32 s30, s30, {WS_Z}
    v_add_u32 v1, s30, v1
    ''')
    for T4 in range(2):
        for t in range(4):
            a(f'v_cvt_pk_bf16_f32 v{12+4*T4+t}, v{accR[T4]+t}, -v{accI[T4]+t}')
        a(f'global_store_dwordx4 v1, {vr(12+4*T4,4)}, s[{SWS}:{SWS+1}] offset:{64*T4} sc1')
    a('s_waitcnt vmcnt(0)')
    nl = uid('n')
    lds_sig_last(a, C_SIG2, 4, nl)
    gsignal(a, 1)
    a.label(nl)
    ST()

def p3(a, name):
    ST = a.ST
    a.label(f'{name}_p3')
    if STAMPS: ST.reset(9)
    vTID, vVR, vC, vQ = 88, 89, 90, 91
    a(f'''
    s_load_dwordx2 s[8:9], s[0:1], {KA['out']}
    v_lshl_add_u32 v{vTID}, s4, 6, v0
    s_and_b32 s5, s2, 7
    s_lshl_b32 s5, s5, 5
    s_lshr_b32 s6, s2, 3
    s_add_u32 s5, s5, s6              ; b : rows 8b..8b+7
    v_and_b32 v2, 7, v0               ; row
    v_lshrrev_b32 v3, 3, v0
    s_lshl_b32 s6, s4, 3
    v_add_u32 v3, s6, v3              ; kappa
    v_lshlrev_b32 v92, 13, v3
    v_lshl_add_u32 v92, v2, 2, v92
    s_lshl_b32 s6, s5, 5
    v_add_u32 v92, s6, v92
    v_cmp_lt_u32 vcc, 28, v3
    v_mov_b32 v5, 0x7ff00000
    v_cndmask_b32 v92, v92, v5, vcc
    s_add_u32 s10, s{SWS}, {WS_Z}
    s_addc_u32 s11, s{SWS+1}, 0
    s_lshl_b32 s26, s5, 5
    s_add_u32 s26, s26, {WS_GT}
    v_lshl_add_u32 v93, v2, 2, s26
    ''')
    srd(a, 12, 10, 256 * 8192)
    Zr = 8
    WR, WI = 16, 24
    pairs = [(0, 4), (2, 6), (1, 5), (3, 7)]
    pos = {}
    for p, (x, y) in enumerate(pairs): pos[x] = 2 * p; pos[y] = 2 * p + 1
    a(f'''
    v_cvt_f32_u32 v32, v3
    v_mul_f32 v32, {fl(1/448)}, v32
    v_mov_b32 v{WR+pos[0]}, 1.0
    v_mov_b32 v{WI+pos[0]}, 0
    ''')
    for d0 in range(1, 8):
        a(f'v_mul_f32 v33, {fl(float(d0))}, v32')
        a(f'v_cos_f32 v{WR+pos[d0]}, v33')
        a(f'v_sin_f32 v{WI+pos[d0]}, v33')
    GF = 64
    a(f'''
    v_and_b32 v{vC}, 15, v0
    v_lshrrev_b32 v{vQ}, 4, v0
    v_and_b32 v36, 3, v{vC}
    v_lshlrev_b32 v36, 2, v36
    v_lshrrev_b32 v37, 2, v{vC}
    v_add_u32 v36, v36, v37
    s_lshl_b32 s26, s4, 4
    v_add_u32 v36, s26, v36           ; d1
    v_cvt_f32_u32 v37, v36
    v_mul_f32 v37, {fl(1/56)}, v37
    v_lshlrev_b32 v38, 2, v{vQ}
    v_cvt_f32_u32 v39, v38
    v_mul_f32 v40, v37, v39
    v_cmp_gt_u32 vcc, 56, v36
    v_mov_b32 v41, {fl(2.0/(S*D))}
    v_cndmask_b32 v41, 0, v41, vcc
    v_mul_f32 v45, 0.5, v41
    v_cmp_eq_u32 vcc, 0, v{vQ}
    v_cndmask_b32 v46, v41, v45, vcc
    v_cmp_eq_u32 vcc, 3, v{vQ}
    v_cndmask_b32 v47, v41, v45, vcc
    v_mov_b32 v45, 0
    v_cndmask_b32 v45, v41, v45, vcc
    ''')
    for ks in range(2):
        for t in range(4):
            wreg = 41
            if ks == 0 and t == 0: wreg = 46
            if ks == 1: wreg = 47 if t == 0 else 45
            a(f'v_fmamk_f32 v42, v37, {fl(float(16*ks+t))}, v40')
            a(f'v_cos_f32 v43, v42')
            a(f'v_sin_f32 v44, v42')
            a(f'v_mul_f32 v43, v{wreg}, v43')
            a(f'v_mul_f32 v44, v{wreg}, v44')
            a(f'v_cvt_pk_bf16_f32 v{GF+4*ks+t}, v43, -v44')
    a(f'''
    v_mul_u32_u24 v4, {VRS}, v2
    v_lshl_add_u32 v4, v3, 2, v4
    v_add_u32 v4, {VB}, v4
    v_lshrrev_b32 v5, 3, v{vC}        ; hi
    v_mul_u32_u24 v46, {32*VRS}, v5
    v_mul_u32_u24 v47, {VRS}, v2
    v_add_u32 v46, v46, v47
    v_lshl_add_u32 v46, v{vQ}, 4, v46
    v_add_u32 v{vVR}, {VB}, v46
    s_waitcnt lgkmcnt(0)
    ''')
    ST()
    lds_wait(a, F_S2, 1)
    for m in range(8):
        a(f's_mov_b32 s27, {m << 18}')
        a(f'buffer_load_dword v{Zr+m}, v92, s[12:15], s27 offen sc1')
    a(f'global_load_dword v7, v93, s[{SWS}:{SWS+1}] sc1')
    a('s_waitcnt vmcnt(0)')
    ST()
    zr = [72, 74, 76, 78]; zi = [80, 82, 84, 86]
    for m in range(8):
        a(f'v_lshlrev_b32 v{zr[m>>1]+(m&1)}, 16, v{Zr+m}')
        a(f'v_and_b32 v{zi[m>>1]+(m&1)}, 0xffff0000, v{Zr+m}')
    res = radix8(a, zr, zi, 48, None, inverse=True)
    t0, t1 = 32, 34
    for p, (x, y) in enumerate(pairs):
        R, I = res[x]
        wr, wi = WR + 2 * p, WI + 2 * p
        a(f'v_pk_mul_f32 {pair(t0)}, {pair(I)}, {pair(wi)}')
        a(f'v_pk_mul_f32 {pair(t1)}, {pair(R)}, {pair(wi)}')
        a(f'v_pk_fma_f32 {pair(R)}, {pair(R)}, {pair(wr)}, {pair(t0)} neg_lo:[0,0,1] neg_hi:[0,0,1]')
        a(f'v_pk_fma_f32 {pair(I)}, {pair(I)}, {pair(wr)}, {pair(t1)}')
    for d0 in range(8):
        a(f'v_cvt_pk_bf16_f32 v{8+d0}, v{res[d0][0]}, v{res[d0][1]}')
        a(f'ds_write_b32 v4, v{8+d0} offset:{8*VRS*d0}')
    a(f'''
    v_bfe_u32 v16, v0, 2, 2
    v_and_b32 v17, 3, v0
    v_lshrrev_b32 v18, 1, v17
    v_and_b32 v17, 1, v17
    v_lshlrev_b32 v16, 4, v16
    v_lshl_add_u32 v16, v18, 6, v16
    v_lshl_add_u32 v16, v17, 3, v16
    v_lshl_add_u32 v16, v{vQ}, 7, v16
    s_lshl_b32 s26, s4, 11
    s_add_u32 s26, s26, {AB}
    v_add_u32 v16, s26, v16
    v_mul_u32_u24 v17, 912, v2
    v_lshl_add_u32 v17, v{vQ}, 4, v17
    v_lshl_add_u32 v17, v5, 3, v17
    s_lshl_b32 s26, s4, 8
    s_add_u32 s26, s26, {OB}
    v_add_u32 v17, s26, v17
    v_sub_f32 v18, 1.0, v7
    v_cvt_pk_bf16_f32 v18, v18, v18
    v_lshlrev_b32 v18, 16, v18
    ''')
    gbar(a, B_P1, 4)
    VF = [48, 52, 56, 60, 72, 76, 80, 84]
    acc = [32, 36, 40, 44]
    for i in range(4):
        for ks in range(2):
            a(f'ds_read_b128 {vr(VF[2*i+ks],4)}, v{vVR} offset:{8*VRS*i + 64*ks}')
    for i in range(4):
        for ks in range(2):
            a(f's_waitcnt lgkmcnt({7 - (2*i+ks)})')
            c = '0' if ks == 0 else vr(acc[i], 4)
            a(f'v_mfma_f32_16x16x32_bf16 {vr(acc[i],4)}, {vr(GF+4*ks,4)}, {vr(VF[2*i+ks],4)}, {c}')
    ST()
    lds_wait(a, C_DA, 4)
    ST()
    for t in range(4):
        a(f'ds_read_b64_tr_b16 {vr(8+2*t,2)}, v16 offset:{512*t}')
    a('s_waitcnt lgkmcnt(0)')
    for t in range(4):
        if t == 2:
            a('s_cmp_eq_u32 s4, 3')
            a(f's_cbranch_scc1 {name}_epi_done')
        d0, d1 = 8 + 2 * t, 9 + 2 * t
        a(f'v_lshlrev_b32 v20, 16, v{d0}')
        a(f'v_and_b32 v21, 0xffff0000, v{d0}')
        a(f'v_lshlrev_b32 v22, 16, v{d1}')
        a(f'v_and_b32 v23, 0xffff0000, v{d1}')
        for i in range(4):
            a(f'v_mul_f32 v{24+i}, v18, v{acc[i]+t}')
        for i in range(4):
            a(f'v_fmac_f32 v{24+i}, v7, v{20+i}')
        a(f'v_cvt_pk_bf16_f32 v{28+2*(t&1)}, v24, v25')
        a(f'v_cvt_pk_bf16_f32 v{29+2*(t&1)}, v26, v27')
        a(f'ds_write_b64 v17, {vr(28+2*(t&1),2)} offset:{64*t}')
    a.label(f'{name}_epi_done')
    a(f'''
    v_add_u32 v2, 256, v{vTID}
    s_mov_b32 s26, {(2**32 + 55)//56}
    v_mul_hi_u32 v3, v{vTID}, s26
    v_mul_hi_u32 v4, v2, s26
    v_mul_u32_u24 v5, {912 - 896}, v3
    v_lshl_add_u32 v5, v{vTID}, 4, v5
    v_add_u32 v5, {OB}, v5
    v_mul_u32_u24 v6, {912 - 896}, v4
    v_lshl_add_u32 v6, v2, 4, v6
    v_add_u32 v6, {OB}, v6
    s_mul_i32 s26, s5, 7168
    v_lshl_add_u32 v7, v{vTID}, 4, s26
    ''')
    gbar(a, B_P2, 4)
    a(f'''
    ds_read_b128 v[8:11], v5
    v_cmp_gt_u32 vcc, 192, v{vTID}
    s_and_saveexec_b64 s[28:29], vcc
    s_cbranch_execz {name}_one
    ds_read_b128 v[12:15], v6
    v_add_u32 v6, 4096, v7
    s_waitcnt lgkmcnt(0)
    global_store_dwordx4 v6, v[12:15], s[8:9]
    ''')
    a.label(f'{name}_one')
    a(f'''
    s_mov_b64 exec, s[28:29]
    s_waitcnt lgkmcnt(0)
    global_store_dwordx4 v7, v[8:11], s[8:9]
    ''')
    if STAMPS: ST.flush()
    a('s_endpgm')
```

```python
from mc import *

def role_t(a, name):
    ST = a.ST
    a.label(f'{name}_T')
    ST.reset(1)
    a(f'''
    s_load_dwordx2 s[8:9], s[0:1], {KA['u']}
    s_load_dwordx4 s[16:19], s[0:1], {KA['w_r']}
    s_sub_u32 s4, s3, 12                 ; v
    s_and_b32 s5, s2, 7
    s_lshr_b32 s6, s2, 3
    s_cmp_lg_u32 s4, 0
    s_cbranch_scc1 {name}_t_nz
    v_lshlrev_b32 v2, 2, v0
    ds_write_b32 v2, v{V0}
    ''')
    a.label(f'{name}_t_nz')
    a(f'''
    ''')
    a(f'''
    s_mul_i32 s7, s4, {TS}
    s_add_u32 s7, s7, {TR}
    s_and_b32 s37, s2, 1                 ; half
    s_lshr_b32 s38, s2, 1                ; pg
    s_lshr_b32 s39, s38, 5               ; w_
    s_bfe_u32 s40, s38, 0x20003          ; g_
    s_and_b32 s41, s38, 7                ; a_
    s_lshl_b32 s29, s41, 1
    s_lshl_b32 s30, s39, 4
    s_add_u32 s29, s29, s30
    s_lshl_b32 s30, s40, 8
    s_add_u32 s29, s29, s30              ; P0
    s_lshl_b32 s42, s37, 2
    s_add_u32 s42, s42, s4               ; m
    s_mul_i32 s31, s42, 56
    v_and_b32 v24, 31, v0                ; kappa
    v_lshrrev_b32 v25, 5, v0             ; T
    v_lshlrev_b32 v26, 10, v25
    v_add_u32 v26, s29, v26              ; vp
    s_cmp_eq_u32 s37, 0
    s_cbranch_scc1 {name}_wdir
    v_sub_u32 v26, 2048, v26
    s_sub_u32 s31, 448, s31
    v_sub_u32 v27, s31, v24
    s_mov_b32 s33, -450
    s_mov_b32 s34, 0x80000000
    s_branch {name}_wcom
    ''')
    a.label(f'{name}_wdir')
    a(f'''
    v_add_u32 v27, s31, v24
    s_mov_b32 s33, 450
    s_mov_b32 s34, 0
    ''')
    a.label(f'{name}_wcom')
    a(f'''
    s_movk_i32 s35, 450
    v_lshlrev_b32 v27, 1, v27
    v_mad_u32_u24 v28, v26, s35, v27
    v_and_b32 v26, 2047, v26
    v_mad_u32_u24 v29, v26, s35, v27
    s_waitcnt lgkmcnt(0)
    ''')
    srd(a, 12, 8, XBYTES)
    a(f'''
    s_cmp_eq_u32 s5, 7
    s_cbranch_scc1 {name}_t_nox
    s_lshl_b32 s43, s5, 7
    s_lshl_b32 s44, s4, 5
    s_add_u32 s43, s43, s44              ; 128 dt + 32 v
    s_lshl_b32 s44, s6, 6                ; l0
    s_add_u32 s45, s44, 63
    v_lshrrev_b32 v2, 1, v0
    v_sub_u32 v2, s45, v2
    v_mul_u32_u24 v2, 896, v2
    v_and_b32 v3, 1, v0
    v_lshl_add_u32 v2, v3, 4, v2
    v_add_u32 v2, s43, v2
    s_mov_b32 m0, s7
    v_subrev_u32 v4, {32*896}, v2
    buffer_load_dwordx4 v2, s[12:15], 0 offen lds
    s_add_u32 m0, s7, 1024
    s_sub_u32 s45, s44, 1
    s_mul_i32 s45, s45, 896
    buffer_load_dwordx4 v4, s[12:15], 0 offen lds
    s_add_u32 s45, s45, s43
    s_cmp_eq_u32 s6, 0
    s_cselect_b32 s45, 0x70000000, s45
    v_lshl_add_u32 v4, v3, 4, s45
    s_add_u32 m0, s7, 2048
    s_mov_b64 exec, 3
    buffer_load_dwordx4 v4, s[12:15], 0 offen lds
    s_mov_b64 exec, -1
    ''')
    a.label(f'{name}_t_nox')
    WR_, WI_ = 32, 40
    for cc in range(2):
        for t in range(4):
            dl = cc + 64 * t
            i = 4 * cc + t
            if dl == 0:
                ad = 29
            else:
                a(f's_mul_i32 s36, s33, {dl}')
                a(f'v_add_u32 v30, s36, v28')
                ad = 30
            a(f'global_load_ushort v{WR_+i}, v{ad}, s[16:17]')
            a(f'global_load_ushort v{WI_+i}, v{ad}, s[18:19]')
    a('s_barrier')
    a('s_setprio 2')
    a(f'''
    s_cmp_eq_u32 s5, 7
    s_cbranch_scc1 {name}_w_only
    s_cmp_lg_u32 s4, 2
    s_cbranch_scc1 {name}_t_nt
    v_mov_b32 v20, 0
    v_mov_b32 v21, 0
    v_mov_b32 v22, 0
    v_mov_b32 v23, 0
    v_lshrrev_b32 v5, 1, v0
    v_mul_u32_u24 v5, {UC}, v5
    v_and_b32 v6, 1, v0
    v_lshl_add_u32 v5, v6, 4, v5
    v_add_u32 v5, {UC0 + 4096}, v5
    s_mov_b64 exec, 0xff
    ds_write_b128 v5, v[20:23]
    s_mov_b64 exec, -1
    ''')
    a.label(f'{name}_t_nt')
    a(f'''
    v_lshrrev_b32 v8, 4, v0
    v_bfe_u32 v9, v0, 2, 2
    v_lshl_add_u32 v9, v8, 3, v9
    v_lshlrev_b32 v9, 5, v9
    v_and_b32 v10, 3, v0
    v_lshl_add_u32 v9, v10, 3, v9
    v_add_u32 v9, s7, v9                 ; vTR
    v_and_b32 v10, 15, v0
    v_mul_u32_u24 v10, 144, v10
    v_lshl_add_u32 v10, v8, 4, v10
    s_add_u32 s45, s7, 2080
    v_add_u32 v10, s45, v10              ; vSW
    v_lshrrev_b32 v11, 3, v0
    v_and_b32 v12, 7, v0
    v_mul_u32_u24 v13, 144, v11
    v_lshl_add_u32 v13, v12, 4, v13
    v_add_u32 v13, s45, v13              ; vSR
    s_lshr_b32 s46, s43, 1               ; 64 dt + 16 v
    v_add_u32 v11, s46, v11
    v_mul_u32_u24 v11, {XT_STRIDE}, v11
    v_lshl_add_u32 v11, v12, 4, v11
    s_sub_u32 s47, 31, s6
    s_lshl_b32 s47, s47, 7
    v_add_u32 v11, s47, v11              ; vG
    s_waitcnt vmcnt(16)
    ''')
    R = 64
    for ver in range(2):
        for h in range(2):
            for rd in range(2):
                a(f'ds_read_b64_tr_b16 {vr(R+8*ver+4*h+2*rd,2)}, v9 offset:{1024*h+128*rd+32*ver}')
    for ver in range(2):
        a(f's_waitcnt lgkmcnt({4 if ver == 0 else 0})')
        for h in range(2):
            a(f'ds_write_b128 v10, {vr(R+8*ver+4*h,4)} offset:{64*h}')
        for hh in range(2):
            a(f'ds_read_b128 {vr(R+16+8*ver+4*hh,4)}, v13 offset:{8*144*hh}')
        off = WS_XT0 if ver == 0 else WS_XT1
        a(f's_add_u32 s48, s{SWS}, {off}')
        a(f's_addc_u32 s49, s{SWS+1}, 0')
        a(f'v_add_u32 v14, {8*XT_STRIDE}, v11')
        a('s_waitcnt lgkmcnt(1)')
        a(f'global_store_dwordx4 v11, {vr(R+16+8*ver,4)}, s[48:49] sc1')
        a('s_waitcnt lgkmcnt(0)')
        a(f'global_store_dwordx4 v14, {vr(R+20+8*ver,4)}, s[48:49] sc1')
    a(f'''
    s_cmp_lg_u32 s6, 0
    s_cbranch_scc1 {name}_wpack4
    v_and_b32 v14, 15, v0
    v_add_u32 v14, s46, v14
    v_mul_u32_u24 v14, {XT_STRIDE}, v14
    v_bfe_u32 v15, v0, 4, 1
    v_mul_u32_u24 v15, {WS_XT1-WS_XT0}, v15
    v_add_u32 v14, v14, v15
    v_add_u32 v14, {WS_XT0+4096}, v14
    v_mov_b32 v96, 0
    v_mov_b32 v97, 0
    v_mov_b32 v98, 0
    v_mov_b32 v99, 0
    s_mov_b32 exec_hi, 0
    global_store_dwordx4 v14, v[96:99], s[{SWS}:{SWS+1}] sc1
    s_mov_b64 exec, -1
    s_waitcnt vmcnt(5)
    s_branch {name}_wpack
    ''')
    a.label(f'{name}_wpack4')
    a('s_waitcnt vmcnt(4)')
    a(f's_branch {name}_wpack')
    a.label(f'{name}_w_only')
    a('s_waitcnt vmcnt(0)')
    a.label(f'{name}_wpack')
    P = 48
    for i in range(8):
        a(f'v_lshl_or_b32 v{P+i}, v{WI_+i}, 16, v{WR_+i}')
        a(f'v_xor_b32 v{P+i}, s34, v{P+i}')
    a(f'''
    v_mul_u32_u24 v24, 80, v24
    v_lshl_add_u32 v24, v25, 5, v24
    v_add_u32 v24, s7, v24
    ds_write_b128 v24, v[{P}:{P+3}]
    ds_write_b128 v24, v[{P+4}:{P+7}] offset:16
    v_lshrrev_b32 v26, 2, v0
    v_and_b32 v27, 3, v0
    v_mul_u32_u24 v28, 80, v26
    v_lshl_add_u32 v28, v27, 4, v28
    v_add_u32 v28, s7, v28
    ds_read_b128 v[56:59], v28
    ds_read_b128 v[60:63], v28 offset:{16*80}
    s_lshl_b32 s36, s42, 18
    s_lshl_b32 s29, s39, 11
    s_add_u32 s36, s36, s29
    s_lshl_b32 s29, s40, 9
    s_add_u32 s36, s36, s29
    s_lshl_b32 s29, s41, 6
    s_add_u32 s36, s36, s29
    s_add_u32 s36, s36, {WS_WT}
    v_lshlrev_b32 v26, 13, v26
    v_lshl_add_u32 v26, v27, 4, v26
    v_add_u32 v26, s36, v26
    v_add_u32 v27, {16*8192}, v26
    s_waitcnt lgkmcnt(1)
    global_store_dwordx4 v26, v[56:59], s[{SWS}:{SWS+1}] sc1
    s_waitcnt lgkmcnt(0)
    global_store_dwordx4 v27, v[60:63], s[{SWS}:{SWS+1}] sc1
    ''')
    ST()
    a('s_waitcnt vmcnt(0)')
    nl0 = uid('n')
    lds_sig_last(a, C_SIG1, 8, nl0)
    gsignal(a, 0)
    a.label(nl0)
    a('s_setprio 0')
    ST()
    a(f'''
    s_cmp_lg_u32 s4, 0
    s_cbranch_scc1 {name}_t_w1
    ''')
    lds_wait(a, C_SIG1, 8, sleep=2)
    get_nonce(a, 57)
    a(f's_sleep {SLEEP1}')
    gpoll(a, 0, 256)
    lds_sig(a, F_S1)
    a.label(f'{name}_t_w1')
    lds_wait(a, F_S1, 1)
    ST.reset(3); ST()
    srd(a, 12, SWS, WS_END)
    a(f'''
    s_cmp_ge_u32 s2, 232
    s_cbranch_scc1 {name}_t_nocol
    s_lshr_b32 s26, s6, 4
    s_lshl_b32 s26, s26, 7
    s_lshl_b32 s27, s5, 4
    s_add_u32 s26, s26, s27
    s_and_b32 s27, s6, 15
    s_add_u32 s26, s26, s27
    s_lshl_b32 s26, s26, 4            ; pos*16
    v_lshrrev_b32 v2, 5, v0
    v_lshlrev_b32 v2, 2, v2
    v_xor_b32 v2, v2, v0
    v_lshlrev_b32 v2, 12, v2
    ''')
    for k in range(2):
        a(f's_lshl_b32 s30, s4, 1')
        a(f's_add_u32 s30, s30, {k}')
        a(f's_lshl_b32 s31, s30, 10')
        a(f's_add_u32 m0, s31, {XC}')
        a(f's_lshl_b32 s31, s30, 18')
        a(f's_add_u32 s31, s31, s26')
        a(f's_add_u32 s31, s31, {WS_X1}')
        a(f'buffer_load_dwordx4 v2, s[12:15], s31 offen sc1 lds')
    a.label(f'{name}_t_nocol')
    a(f'''
    s_cmp_eq_u32 s5, 7
    s_cbranch_scc1 {name}_t_nou
    s_lshl_b32 s26, s5, 6
    s_lshl_b32 s27, s6, 1
    s_add_u32 s26, s26, s27
    s_lshr_b32 s27, s4, 1
    s_add_u32 s26, s26, s27
    s_mul_i32 s26, s26, {XT_STRIDE}
    s_and_b32 s27, s4, 1
    s_mul_i32 s27, s27, {WS_XT1 - WS_XT0}
    s_add_u32 s26, s26, s27
    s_add_u32 s26, s26, {WS_XT0}
    s_mul_i32 s27, s4, {UC}
    s_add_u32 s27, s27, {UC0}
    v_lshlrev_b32 v1, 4, v0
    ''')
    for k in range(4):
        a(f's_add_u32 s31, s26, {1024*k}')
        a(f's_add_u32 m0, s27, {1024*k}')
        a(f'buffer_load_dwordx4 v1, s[12:15], s31 offen sc1 lds')
    a('s_waitcnt vmcnt(4)')
    lds_sig(a, C_DX)
    a('s_waitcnt vmcnt(0)')
    lds_sig(a, C_DU)
    a(f's_branch {name}_t_dd')
    a.label(f'{name}_t_nou')
    a('s_waitcnt vmcnt(0)')
    lds_sig(a, C_DX)
    a.label(f'{name}_t_dd')
    ST.reset(4); ST()
    a(f'''
    s_cmp_eq_u32 s4, 1
    s_cbranch_scc1 {name}_t_s3
    s_cmp_lg_u32 s4, 0
    s_cbranch_scc1 {name}_t_w3
    s_cmp_ge_u32 s2, 232
    s_cbranch_scc1 {name}_t_p2
    ''')
    lds_wait(a, C_SIG2, 4, sleep=4)
    a.label(f'{name}_t_p2')
    ST.reset(9); ST()
    a(f's_sleep {SLEEP2}')
    gpoll(a, 1, 232)
    ST.val(59); ST()
    lds_sig(a, F_S2)
    a(f's_branch {name}_t_w3')
    a.label(f'{name}_t_s3')
    a(f'''
    s_cmp_eq_u32 s5, 7
    s_cbranch_scc1 {name}_t_p3b
    ''')
    lds_wait(a, C_SIG3, 4, sleep=4)
    a.label(f'{name}_t_p3b')
    get_nonce(a, 57)
    ST.reset(9); ST()
    a(f's_sleep {SLEEP2}')
    gpoll(a, 2, 'conv')
    ST.val(59); ST()
    lds_sig(a, F_S3)
    a.label(f'{name}_t_w3')
    lds_wait(a, F_S3, 1, sleep=2)
    ST.reset(5); ST()
    a(f'''
    s_lshl_b32 s5, s5, 5
    s_add_u32 s5, s5, s6              ; b
    v_lshlrev_b32 v5, 12, v0
    s_lshl_b32 s26, s5, 4
    s_add_u32 s26, s26, {WS_AT}
    s_lshl_b32 s27, s4, 18
    s_add_u32 s27, s27, s26
    s_lshl_b32 s28, s4, 10
    s_add_u32 m0, s28, {AB}
    s_add_u32 s29, s27, {4 << 18}
    buffer_load_dwordx4 v5, s[12:15], s27 offen sc1 lds
    s_cmp_eq_u32 s4, 3
    s_cbranch_scc1 {name}_t_noa2
    s_add_u32 m0, s28, {AB + 4096}
    s_nop 0
    buffer_load_dwordx4 v5, s[12:15], s29 offen sc1 lds
    ''')
    a.label(f'{name}_t_noa2')
    a('s_waitcnt vmcnt(0)')
    lds_sig(a, C_DA)
    if STAMPS:
        ST.reset(6); ST(); ST.reset(12); ST.n = 12
        ST.flush()
    a('s_endpgm')
```

```python
from common import *
import os
SLEEP1 = int(os.environ.get('SLEEP1', '20'))
SLEEP2 = int(os.environ.get('SLEEP2', '20'))
POLLSLEEP = int(os.environ.get('POLLSLEEP', '4'))

SY = 0
KG = 256; KR = 6144; KROW = 288
B1R = KG + 8 * KR; B1S = 5280
TR = B1R + 4 * B1S; TS = 4608
UC = 4160
UC0 = TR + 4 * TS
KAL = UC0 + 4 * UC
KT = KAL + 2 * 4608
VB = KT + 2 * 2560; VRS = 160
OB = VB + 64 * VRS
AB = OB + 8 * 912
LDS = AB + 8192
RB = KG
XC = TR; EB = TR + 8192
assert EB + 32 * 288 <= UC0 and LDS <= 163840, LDS
C_SIG1, C_SIG2, C_SIG3, F_S1, F_S2, C_DX, C_DU, C_DA = 0, 4, 8, 12, 16, 24, 28, 32
B_K1, B_K2, C_KR, B_CV = 36, 44, 52, 60
B_B2, B_P1, B_P2 = 68, 72, 76
N_NONCE, F_S3 = 80, 84
V1, V0 = 126, 127
VT0, VT1 = 124, 125
SDBG = 60
SWS = 24
SPIN_MAX = 1 << 21
_uid = [0]
def uid(p):
    _uid[0] += 1
    return f'L{p}{_uid[0]}'

def lds_sig(a, off):
    a(f'''
    s_mov_b64 exec, 1
    ds_add_u32 v{V0}, v{V1} offset:{off}
    s_mov_b64 exec, -1
    ''')
def lds_sig_last(a, off, n, lbl_notlast):
    a(f'''
    s_mov_b64 exec, 1
    ds_add_rtn_u32 v{VT0}, v{V0}, v{V1} offset:{off}
    s_waitcnt lgkmcnt(0)
    v_readfirstlane_b32 s58, v{VT0}
    s_mov_b64 exec, -1
    s_cmp_eq_u32 s58, {n-1}
    s_cbranch_scc0 {lbl_notlast}
    ''')
def lds_wait(a, off, n, sreg=None, sleep=1):
    L = uid('w'); E = uid('e')
    if sreg is not None:
        a(f'v_mov_b32 v{VT1}, s{sreg}')
        ad = VT1
    else:
        ad = V0
    a(f's_mov_b32 s59, 0')
    a.label(L)
    a(f'''
    ds_read_b32 v{VT0}, v{ad} offset:{off}
    s_waitcnt lgkmcnt(0)
    v_readfirstlane_b32 s58, v{VT0}
    s_cmp_ge_u32 s58, {n}
    s_cbranch_scc1 {E}
    s_add_u32 s59, s59, 1
    s_cmp_gt_u32 s59, {SPIN_MAX}
    s_cbranch_scc1 {E}
    s_sleep {sleep}
    s_branch {L}
    ''')
    a.label(E)
def lds_sig_s(a, off, sreg):
    a(f'''
    v_mov_b32 v{VT1}, s{sreg}
    s_mov_b64 exec, 1
    ds_add_u32 v{VT1}, v{V1} offset:{off}
    s_mov_b64 exec, -1
    ''')
def gbar(a, off, n, sreg=None):
    a('s_waitcnt lgkmcnt(0)')
    if sreg is None: lds_sig(a, off)
    else: lds_sig_s(a, off, sreg)
    lds_wait(a, off, n, sreg)
def get_nonce(a, sreg):
    L = uid('k'); E = uid('l')
    a(f's_mov_b32 s59, 0')
    a.label(L)
    a(f'''
    ds_read_b32 v{VT0}, v{V0} offset:{N_NONCE}
    s_waitcnt lgkmcnt(0)
    v_readfirstlane_b32 s{sreg}, v{VT0}
    s_cmp_lg_u32 s{sreg}, 0
    s_cbranch_scc1 {E}
    s_add_u32 s59, s59, 1
    s_cmp_gt_u32 s59, {SPIN_MAX}
    s_cbranch_scc1 {E}
    s_sleep 1
    s_branch {L}
    ''')
    a.label(E)
def gsignal(a, which):
    get_nonce(a, 57)
    a(f'''
    s_lshl_b32 s58, s2, 6
    s_add_u32 s58, s58, {WS_FL + 16384*which}
    v_mov_b32 v{VT0}, s58
    v_mov_b32 v{VT1}, s57
    s_mov_b64 exec, 1
    global_store_dword v{VT0}, v{VT1}, s[{SWS}:{SWS+1}] sc1
    s_mov_b64 exec, -1
    ''')
def gpoll(a, which, nprod):
    L = uid('p'); E = uid('q')
    a(f'''
    v_mbcnt_lo_u32_b32 v110, -1, 0
    v_mbcnt_hi_u32_b32 v110, -1, v110
    ''')
    if nprod == 'conv':
        a(f'''
        v_and_b32 v111, 7, v110
        v_cmp_eq_u32 vcc, 7, v111
        v_subrev_u32 v111, 1, v110
        v_cndmask_b32 v111, v110, v111, vcc
        v_lshlrev_b32 v111, 6, v111
        v_add_u32 v111, {WS_FL + 16384*which}, v111
        v_add_u32 v112, 4096, v111
        v_add_u32 v113, 8192, v111
        v_add_u32 v114, 12288, v111
        ''')
    else:
        a(f'''
        v_lshlrev_b32 v111, 6, v110
        v_add_u32 v111, {WS_FL + 16384*which}, v111
        v_add_u32 v112, 4096, v111
        v_add_u32 v113, 8192, v111
        v_add_u32 v114, 12288, v111
        v_cmp_gt_u32 vcc, {nprod - 192}, v110
        v_cndmask_b32 v114, v111, v114, vcc
        ''')
    a(f'''
    s_mov_b32 s59, 0
    ''')
    a.label(L)
    a(f'''
    global_load_dword v116, v111, s[{SWS}:{SWS+1}] sc1
    global_load_dword v117, v112, s[{SWS}:{SWS+1}] sc1
    global_load_dword v118, v113, s[{SWS}:{SWS+1}] sc1
    global_load_dword v119, v114, s[{SWS}:{SWS+1}] sc1
    s_waitcnt vmcnt(0)
    v_xor_b32 v116, s57, v116
    v_xor_b32 v117, s57, v117
    v_xor_b32 v118, s57, v118
    v_xor_b32 v119, s57, v119
    v_or_b32 v116, v116, v117
    v_or_b32 v118, v118, v119
    v_or_b32 v116, v116, v118
    v_cmp_ne_u32 vcc, 0, v116
    s_cmp_eq_u64 vcc, 0
    s_cbranch_scc1 {E}
    s_add_u32 s59, s59, 1
    s_cmp_gt_u32 s59, {SPIN_MAX >> 4}
    s_cbranch_scc1 {E}
    s_sleep {POLLSLEEP}
    s_branch {L}
    ''')
    a.label(E)
```

```python
import sys, os
from common import *
import k1
NAME = 'gated_mix__ssm_conv_s4__spectral_gfnet__prompt'
def build(kernels):
    hdr = open('cdna_kernels/' + NAME + '.s.ref').read().split('; Override launch')[0]
    s = hdr
    for (nm, gen, grid, block, lds, vg) in kernels:
        s += f'; @launch kernel={nm} grid=({grid},1,1) block=({block},1,1) lds={lds}\n'
    s += '.amdgcn_target "amdgcn-amd-amdhsa--gfx950"\n.text\n'
    for (nm, gen, grid, block, lds, vg) in kernels:
        a = gen(nm)
        s += kernel_head(nm) + a.finish() + kernel_desc(nm, vg)
    return s
def build_single(gen, grid, block, lds, vg):
    hdr = open('cdna_kernels/' + NAME + '.s.ref').read().split('; Override launch')[0]
    nm = NAME + '_kernel'
    s = hdr + f'; @launch grid=({grid},1,1) block=({block},1,1) lds={lds}\n'
    s += '.amdgcn_target "amdgcn-amd-amdhsa--gfx950"\n.text\n'
    a = gen(nm)
    s += kernel_head(nm) + a.finish() + kernel_desc(nm, vg)
    return s
if __name__ == '__main__':
    if os.environ.get('MERGED', '1') == '1':
        import m, mc
        out = sys.argv[1] if len(sys.argv) > 1 else 'cdna_kernels/' + NAME + '.s'
        open(out, 'w').write(build_single(m.gen_m, 256, 1024, mc.LDS, 128))
        print('wrote', out, 'LDS', mc.LDS)
        sys.exit(0)
    ks = [('k1_kernel', k1.gen_k1, 256, 1024, k1.K1_LDS, 128)]
    try:
        import k2, k3
        ks.append(('k2_kernel', k2.gen_k2, k2.GRID, k2.BLOCK, k2.LDS, k2.VGPR))
        ks.append(('k3_kernel', k3.gen_k3, 256, 256, k3.LDS, k3.VGPR))
    except ImportError as e:
        print('partial build', e)
    out = sys.argv[1] if len(sys.argv) > 1 else 'cdna_kernels/' + NAME + '.s'
    open(out, 'w').write(build(ks))
    print('wrote', out)
```

```python
from mc import *
PREFETCH = os.environ.get('PREFETCH', '0') == '1'

def role_t(a, name):
    ST = a.ST
    a.label(f'{name}_T')
    ST.reset(1)
    a(f'''
    s_load_dwordx2 s[8:9], s[0:1], {KA['u']}
    s_load_dwordx4 s[16:19], s[0:1], {KA['w_r']}
    s_sub_u32 s4, s3, 12                 ; v
    s_and_b32 s5, s2, 7
    s_lshr_b32 s6, s2, 3
    s_cmp_lg_u32 s4, 0
    s_cbranch_scc1 {name}_t_nz
    v_lshlrev_b32 v2, 2, v0
    ds_write_b32 v2, v{V0}
    ''')
    a.label(f'{name}_t_nz')
    if PREFETCH:
        a(f'''
        s_cmp_lg_u32 s4, 3
        s_cbranch_scc1 {name}_t_npf
        s_getpc_b64 s[50:51]
        ''')
        a.label(f'{name}_pc')
        a(f'''
        s_add_u32 s50, s50, {name}-{name}_pc
        s_addc_u32 s51, s51, -1
        v_lshlrev_b32 v100, 7, v0
        global_load_dword v101, v100, s[50:51]
        v_add_u32 v100, 8192, v100
        v_min_u32 v100, {name}_codeend-{name}-4, v100
        global_load_dword v102, v100, s[50:51]
        ''')
        a.label(f'{name}_t_npf')
    a(f'''
    ''')
    a(f'''
    s_mul_i32 s7, s4, {TS}
    s_add_u32 s7, s7, {TR}
    s_and_b32 s37, s2, 1                 ; half
    s_lshr_b32 s38, s2, 1                ; pg
    s_lshr_b32 s39, s38, 5               ; w_
    s_bfe_u32 s40, s38, 0x20003          ; g_
    s_and_b32 s41, s38, 7                ; a_
    s_lshl_b32 s29, s41, 1
    s_lshl_b32 s30, s39, 4
    s_add_u32 s29, s29, s30
    s_lshl_b32 s30, s40, 8
    s_add_u32 s29, s29, s30              ; P0
    s_lshl_b32 s42, s37, 2
    s_add_u32 s42, s42, s4               ; m
    s_mul_i32 s31, s42, 56
    v_and_b32 v24, 31, v0                ; kappa
    v_lshrrev_b32 v25, 5, v0             ; T
    v_lshlrev_b32 v26, 10, v25
    v_add_u32 v26, s29, v26              ; vp
    s_cmp_eq_u32 s37, 0
    s_cbranch_scc1 {name}_wdir
    v_sub_u32 v26, 2048, v26
    s_sub_u32 s31, 448, s31
    v_sub_u32 v27, s31, v24
    s_mov_b32 s33, -450
    s_mov_b32 s34, 0x80000000
    s_branch {name}_wcom
    ''')
    a.label(f'{name}_wdir')
    a(f'''
    v_add_u32 v27, s31, v24
    s_mov_b32 s33, 450
    s_mov_b32 s34, 0
    ''')
    a.label(f'{name}_wcom')
    a(f'''
    s_movk_i32 s35, 450
    v_lshlrev_b32 v27, 1, v27
    v_mad_u32_u24 v28, v26, s35, v27
    v_and_b32 v26, 2047, v26
    v_mad_u32_u24 v29, v26, s35, v27
    s_waitcnt lgkmcnt(0)
    ''')
    srd(a, 12, 8, XBYTES)
    a(f'''
    s_cmp_eq_u32 s5, 7
    s_cbranch_scc1 {name}_t_nox
    s_lshl_b32 s43, s5, 7
    s_lshl_b32 s44, s4, 5
    s_add_u32 s43, s43, s44              ; 128 dt + 32 v
    s_lshl_b32 s44, s6, 6                ; l0
    s_add_u32 s45, s44, 63
    v_lshrrev_b32 v2, 1, v0
    v_sub_u32 v2, s45, v2
    v_mul_u32_u24 v2, 896, v2
    v_and_b32 v3, 1, v0
    v_lshl_add_u32 v2, v3, 4, v2
    v_add_u32 v2, s43, v2
    s_mov_b32 m0, s7
    v_subrev_u32 v4, {32*896}, v2
    buffer_load_dwordx4 v2, s[12:15], 0 offen lds
    s_add_u32 m0, s7, 1024
    s_sub_u32 s45, s44, 1
    s_mul_i32 s45, s45, 896
    buffer_load_dwordx4 v4, s[12:15], 0 offen lds
    s_add_u32 s45, s45, s43
    s_cmp_eq_u32 s6, 0
    s_cselect_b32 s45, 0x70000000, s45
    v_lshl_add_u32 v4, v3, 4, s45
    s_add_u32 m0, s7, 2048
    s_mov_b64 exec, 3
    buffer_load_dwordx4 v4, s[12:15], 0 offen lds
    s_mov_b64 exec, -1
    ''')
    a.label(f'{name}_t_nox')
    WR_, WI_ = 32, 40
    for cc in range(2):
        for t in range(4):
            dl = cc + 64 * t
            i = 4 * cc + t
            if dl == 0:
                ad = 29
            else:
                a(f's_mul_i32 s36, s33, {dl}')
                a(f'v_add_u32 v30, s36, v28')
                ad = 30
            a(f'global_load_ushort v{WR_+i}, v{ad}, s[16:17]')
            a(f'global_load_ushort v{WI_+i}, v{ad}, s[18:19]')
    a('s_barrier')
    a('s_setprio 2')
    a(f'''
    s_cmp_eq_u32 s5, 7
    s_cbranch_scc1 {name}_w_only
    s_cmp_lg_u32 s4, 2
    s_cbranch_scc1 {name}_t_nt
    v_mov_b32 v20, 0
    v_mov_b32 v21, 0
    v_mov_b32 v22, 0
    v_mov_b32 v23, 0
    v_lshrrev_b32 v5, 1, v0
    v_mul_u32_u24 v5, {UC}, v5
    v_and_b32 v6, 1, v0
    v_lshl_add_u32 v5, v6, 4, v5
    v_add_u32 v5, {UC0 + 4096}, v5
    s_mov_b64 exec, 0xff
    ds_write_b128 v5, v[20:23]
    s_mov_b64 exec, -1
    ''')
    a.label(f'{name}_t_nt')
    a(f'''
    v_lshrrev_b32 v8, 4, v0
    v_bfe_u32 v9, v0, 2, 2
    v_lshl_add_u32 v9, v8, 3, v9
    v_lshlrev_b32 v9, 5, v9
    v_and_b32 v10, 3, v0
    v_lshl_add_u32 v9, v10, 3, v9
    v_add_u32 v9, s7, v9                 ; vTR
    v_and_b32 v10, 15, v0
    v_mul_u32_u24 v10, 144, v10
    v_lshl_add_u32 v10, v8, 4, v10
    s_add_u32 s45, s7, 2080
    v_add_u32 v10, s45, v10              ; vSW
    v_lshrrev_b32 v11, 3, v0
    v_and_b32 v12, 7, v0
    v_mul_u32_u24 v13, 144, v11
    v_lshl_add_u32 v13, v12, 4, v13
    v_add_u32 v13, s45, v13              ; vSR
    s_lshr_b32 s46, s43, 1               ; 64 dt + 16 v
    v_add_u32 v11, s46, v11
    v_mul_u32_u24 v11, {XT_STRIDE}, v11
    v_lshl_add_u32 v11, v12, 4, v11
    s_sub_u32 s47, 31, s6
    s_lshl_b32 s47, s47, 7
    v_add_u32 v11, s47, v11              ; vG
    s_waitcnt vmcnt(16)
    ''')
    R = 64
    for ver in range(2):
        for h in range(2):
            for rd in range(2):
                a(f'ds_read_b64_tr_b16 {vr(R+8*ver+4*h+2*rd,2)}, v9 offset:{1024*h+128*rd+32*ver}')
    for ver in range(2):
        a(f's_waitcnt lgkmcnt({4 if ver == 0 else 0})')
        for h in range(2):
            a(f'ds_write_b128 v10, {vr(R+8*ver+4*h,4)} offset:{64*h}')
        for hh in range(2):
            a(f'ds_read_b128 {vr(R+16+8*ver+4*hh,4)}, v13 offset:{8*144*hh}')
        off = WS_XT0 if ver == 0 else WS_XT1
        a(f's_add_u32 s48, s{SWS}, {off}')
        a(f's_addc_u32 s49, s{SWS+1}, 0')
        a(f'v_add_u32 v14, {8*XT_STRIDE}, v11')
        a('s_waitcnt lgkmcnt(1)')
        a(f'global_store_dwordx4 v11, {vr(R+16+8*ver,4)}, s[48:49] sc1')
        a('s_waitcnt lgkmcnt(0)')
        a(f'global_store_dwordx4 v14, {vr(R+20+8*ver,4)}, s[48:49] sc1')
    a(f'''
    s_cmp_lg_u32 s6, 0
    s_cbranch_scc1 {name}_wpack4
    v_and_b32 v14, 15, v0
    v_add_u32 v14, s46, v14
    v_mul_u32_u24 v14, {XT_STRIDE}, v14
    v_bfe_u32 v15, v0, 4, 1
    v_mul_u32_u24 v15, {WS_XT1-WS_XT0}, v15
    v_add_u32 v14, v14, v15
    v_add_u32 v14, {WS_XT0+4096}, v14
    v_mov_b32 v96, 0
    v_mov_b32 v97, 0
    v_mov_b32 v98, 0
    v_mov_b32 v99, 0
    s_mov_b32 exec_hi, 0
    global_store_dwordx4 v14, v[96:99], s[{SWS}:{SWS+1}] sc1
    s_mov_b64 exec, -1
    s_waitcnt vmcnt(5)
    s_branch {name}_wpack
    ''')
    a.label(f'{name}_wpack4')
    a('s_waitcnt vmcnt(4)')
    a(f's_branch {name}_wpack')
    a.label(f'{name}_w_only')
    a('s_waitcnt vmcnt(0)')
    a.label(f'{name}_wpack')
    P = 48
    for i in range(8):
        a(f'v_lshl_or_b32 v{P+i}, v{WI_+i}, 16, v{WR_+i}')
        a(f'v_xor_b32 v{P+i}, s34, v{P+i}')
    a(f'''
    v_mul_u32_u24 v24, 80, v24
    v_lshl_add_u32 v24, v25, 5, v24
    v_add_u32 v24, s7, v24
    ds_write_b128 v24, v[{P}:{P+3}]
    ds_write_b128 v24, v[{P+4}:{P+7}] offset:16
    v_lshrrev_b32 v26, 2, v0
    v_and_b32 v27, 3, v0
    v_mul_u32_u24 v28, 80, v26
    v_lshl_add_u32 v28, v27, 4, v28
    v_add_u32 v28, s7, v28
    ds_read_b128 v[56:59], v28
    ds_read_b128 v[60:63], v28 offset:{16*80}
    s_lshl_b32 s36, s42, 18
    s_lshl_b32 s29, s39, 11
    s_add_u32 s36, s36, s29
    s_lshl_b32 s29, s40, 9
    s_add_u32 s36, s36, s29
    s_lshl_b32 s29, s41, 6
    s_add_u32 s36, s36, s29
    s_add_u32 s36, s36, {WS_WT}
    v_lshlrev_b32 v26, 13, v26
    v_lshl_add_u32 v26, v27, 4, v26
    v_add_u32 v26, s36, v26
    v_add_u32 v27, {16*8192}, v26
    s_waitcnt lgkmcnt(1)
    global_store_dwordx4 v26, v[56:59], s[{SWS}:{SWS+1}] sc1
    s_waitcnt lgkmcnt(0)
    global_store_dwordx4 v27, v[60:63], s[{SWS}:{SWS+1}] sc1
    ''')
    ST()
    a('s_waitcnt vmcnt(0)')
    nl0 = uid('n')
    lds_sig_last(a, C_SIG1, 8, nl0)
    gsignal(a, 0)
    a.label(nl0)
    a('s_setprio 0')
    ST()
    a(f'''
    s_cmp_lg_u32 s4, 0
    s_cbranch_scc1 {name}_t_w1
    ''')
    lds_wait(a, C_SIG1, 8, sleep=2)
    get_nonce(a, 57)
    a(f's_sleep {SLEEP1}')
    gpoll(a, 0, 256)
    lds_sig(a, F_S1)
    a.label(f'{name}_t_w1')
    lds_wait(a, F_S1, 1)
    ST.reset(3); ST()
    srd(a, 12, SWS, WS_END)
    a(f'''
    s_cmp_ge_u32 s2, 232
    s_cbranch_scc1 {name}_t_nocol
    s_lshr_b32 s26, s6, 4
    s_lshl_b32 s26, s26, 7
    s_lshl_b32 s27, s5, 4
    s_add_u32 s26, s26, s27
    s_and_b32 s27, s6, 15
    s_add_u32 s26, s26, s27
    s_lshl_b32 s26, s26, 4            ; pos*16
    v_lshrrev_b32 v2, 5, v0
    v_lshlrev_b32 v2, 2, v2
    v_xor_b32 v2, v2, v0
    v_lshlrev_b32 v2, 12, v2
    ''')
    for k in range(2):
        a(f's_lshl_b32 s30, s4, 1')
        a(f's_add_u32 s30, s30, {k}')
        a(f's_lshl_b32 s31, s30, 10')
        a(f's_add_u32 m0, s31, {XC}')
        a(f's_lshl_b32 s31, s30, 18')
        a(f's_add_u32 s31, s31, s26')
        a(f's_add_u32 s31, s31, {WS_X1}')
        a(f'buffer_load_dwordx4 v2, s[12:15], s31 offen sc1 lds')
    a.label(f'{name}_t_nocol')
    a(f'''
    s_cmp_eq_u32 s5, 7
    s_cbranch_scc1 {name}_t_nou
    s_lshl_b32 s26, s5, 6
    s_lshl_b32 s27, s6, 1
    s_add_u32 s26, s26, s27
    s_lshr_b32 s27, s4, 1
    s_add_u32 s26, s26, s27
    s_mul_i32 s26, s26, {XT_STRIDE}
    s_and_b32 s27, s4, 1
    s_mul_i32 s27, s27, {WS_XT1 - WS_XT0}
    s_add_u32 s26, s26, s27
    s_add_u32 s26, s26, {WS_XT0}
    s_mul_i32 s27, s4, {UC}
    s_add_u32 s27, s27, {UC0}
    v_lshlrev_b32 v1, 4, v0
    ''')
    for k in range(4):
        a(f's_add_u32 s31, s26, {1024*k}')
        a(f's_add_u32 m0, s27, {1024*k}')
        a(f'buffer_load_dwordx4 v1, s[12:15], s31 offen sc1 lds')
    a('s_waitcnt vmcnt(4)')
    lds_sig(a, C_DX)
    a('s_waitcnt vmcnt(0)')
    lds_sig(a, C_DU)
    a(f's_branch {name}_t_dd')
    a.label(f'{name}_t_nou')
    a('s_waitcnt vmcnt(0)')
    lds_sig(a, C_DX)
    a.label(f'{name}_t_dd')
    ST.reset(4); ST()
    a(f'''
    s_cmp_eq_u32 s4, 1
    s_cbranch_scc1 {name}_t_s3
    s_cmp_lg_u32 s4, 0
    s_cbranch_scc1 {name}_t_w3
    s_cmp_ge_u32 s2, 232
    s_cbranch_scc1 {name}_t_p2
    ''')
    lds_wait(a, C_SIG2, 4, sleep=4)
    a.label(f'{name}_t_p2')
    ST.reset(9); ST()
    a(f's_sleep {SLEEP2}')
    gpoll(a, 1, 232)
    ST.val(59); ST()
    lds_sig(a, F_S2)
    a(f's_branch {name}_t_w3')
    a.label(f'{name}_t_s3')
    a(f'''
    s_cmp_eq_u32 s5, 7
    s_cbranch_scc1 {name}_t_p3b
    ''')
    lds_wait(a, C_SIG3, 4, sleep=4)
    a.label(f'{name}_t_p3b')
    get_nonce(a, 57)
    ST.reset(9); ST()
    a(f's_sleep {SLEEP2}')
    gpoll(a, 2, 'conv')
    ST.val(59); ST()
    lds_sig(a, F_S3)
    a.label(f'{name}_t_w3')
    lds_wait(a, F_S3, 1, sleep=2)
    ST.reset(5); ST()
    a(f'''
    s_lshl_b32 s5, s5, 5
    s_add_u32 s5, s5, s6              ; b
    v_lshlrev_b32 v5, 12, v0
    s_lshl_b32 s26, s5, 4
    s_add_u32 s26, s26, {WS_AT}
    s_lshl_b32 s27, s4, 18
    s_add_u32 s27, s27, s26
    s_lshl_b32 s28, s4, 10
    s_add_u32 m0, s28, {AB}
    s_add_u32 s29, s27, {4 << 18}
    buffer_load_dwordx4 v5, s[12:15], s27 offen sc1 lds
    s_cmp_eq_u32 s4, 3
    s_cbranch_scc1 {name}_t_noa2
    s_add_u32 m0, s28, {AB + 4096}
    s_nop 0
    buffer_load_dwordx4 v5, s[12:15], s29 offen sc1 lds
    ''')
    a.label(f'{name}_t_noa2')
    a('s_waitcnt vmcnt(0)')
    lds_sig(a, C_DA)
    if STAMPS:
        ST.reset(6); ST(); ST.reset(12); ST.n = 12
        ST.flush()
    a('s_endpgm')
```
